```python
import torch

def _softmax(x, axis=-1):
    return torch.softmax(x, dim=axis)
def _gelu(x):
    return torch.nn.functional.gelu(x, approximate="tanh")
def _silu(x):
    return torch.nn.functional.silu(x)
def _sigmoid(x):
    return torch.sigmoid(x)
def _layernorm(x, axis=-1, eps=1e-5):
    m = x.mean(dim=axis, keepdim=True)
    v = x.var(dim=axis, keepdim=True, unbiased=False)
    return (x - m) / torch.sqrt(v + eps)
def _scatter_add(tgt, idx, src, axis=0):
    return tgt.clone().index_add_(axis, idx, src)
def _segment_sum(src, seg, n):
    out = torch.zeros((n,) + src.shape[1:], dtype=src.dtype)
    return out.index_add_(0, seg, src)
def _pad(x, pw):
    flat = tuple(v for pair in reversed(pw) for v in pair)
    return torch.nn.functional.pad(x, flat)

kernel_name = 'gated_mix__gqa_block_cached__gqa_block_cached__decode'

def setup_inputs():

    _w = (lambda a: (lambda t: t.to(torch.bfloat16) if t.is_floating_point() else t)(torch.as_tensor(a)))
    def _A_setup():
        B, Sq, D = 2, 1, 448
        Hq, Hkv, Sk, Dh = 16, 8, 8192, 256
        assert Hq % Hkv == 0, (Hq, Hkv)
        return {
            "x": _w((lambda *s: torch.randn(*s, dtype=torch.bfloat16) * 0.05)(B, Sq, D)),
            "k_cache": _w((lambda *s: torch.randn(*s, dtype=torch.bfloat16) * 6.4)(B, Hkv, Sk, Dh)),
            "v_cache": _w((lambda *s: torch.randn(*s, dtype=torch.bfloat16) * 0.05)(B, Hkv, Sk, Dh)),
            "wq": _w((lambda *s: torch.randn(*s, dtype=torch.bfloat16) * 6.4)(D, Hq * Dh) * (D ** -0.5)),
            "wo": _w((lambda *s: torch.randn(*s, dtype=torch.bfloat16) * 0.05)(Hq * Dh, D) * ((Hq * Dh) ** -0.5)),
        }
    _A_in = _A_setup()

    def _B_setup():
        B, Sq, D = 2, 1, 448
        Hq, Hkv, Sk, Dh = 16, 8, 8192, 256
        assert Hq % Hkv == 0, (Hq, Hkv)
        return {
            "x": _w((lambda *s: torch.randn(*s, dtype=torch.bfloat16) * 0.05)(B, Sq, D)),
            "k_cache": _w((lambda *s: torch.randn(*s, dtype=torch.bfloat16) * 6.4)(B, Hkv, Sk, Dh)),
            "v_cache": _w((lambda *s: torch.randn(*s, dtype=torch.bfloat16) * 0.05)(B, Hkv, Sk, Dh)),
            "wq": _w((lambda *s: torch.randn(*s, dtype=torch.bfloat16) * 6.4)(D, Hq * Dh) * (D ** -0.5)),
            "wo": _w((lambda *s: torch.randn(*s, dtype=torch.bfloat16) * 0.05)(Hq * Dh, D) * ((Hq * Dh) ** -0.5)),
        }
    _B_in = _B_setup()

    return {
        "A_x": _A_in["x"],
        "A_k_cache": _A_in["k_cache"],
        "A_v_cache": _A_in["v_cache"],
        "A_wq": _A_in["wq"],
        "A_wo": _A_in["wo"],
        "B_x": _B_in["x"],
        "B_k_cache": _B_in["k_cache"],
        "B_v_cache": _B_in["v_cache"],
        "B_wq": _B_in["wq"],
        "B_wo": _B_in["wo"],
        "gate_w": _w((lambda *s: torch.randn(*s, dtype=torch.bfloat16) * 0.05)(448) * 16.0),
    }

def reference(A_x, A_k_cache, A_v_cache, A_wq, A_wo, B_x, B_k_cache, B_v_cache, B_wq, B_wo, gate_w):
    def _A_ref(x, k_cache, v_cache, wq, wo):
        B, Sq, D = x.shape
        Hq, Dh = 16, 256
        Hkv = k_cache.shape[1]
        rep = Hq // Hkv
        q = (lambda x, *d: x.permute(*d))((x @ wq).reshape(B, Sq, Hq, Dh), 0, 2, 1, 3)
        k = (lambda x, n, axis: torch.repeat_interleave(x, n, dim=axis))(k_cache, rep, axis=1)
        v = (lambda x, n, axis: torch.repeat_interleave(x, n, dim=axis))(v_cache, rep, axis=1)
        scores = torch.einsum("bhqd,bhkd->bhqk", q, k) * (Dh ** -0.5)
        p = _softmax(scores, axis=-1)
        o = torch.einsum("bhqk,bhkd->bhqd", p, v)
        return (lambda x, *d: x.permute(*d))(o, 0, 2, 1, 3).reshape(B, Sq, Hq * Dh) @ wo

    def _B_ref(x, k_cache, v_cache, wq, wo):
        B, Sq, D = x.shape
        Hq, Dh = 16, 256
        Hkv = k_cache.shape[1]
        rep = Hq // Hkv
        q = (lambda x, *d: x.permute(*d))((x @ wq).reshape(B, Sq, Hq, Dh), 0, 2, 1, 3)
        k = (lambda x, n, axis: torch.repeat_interleave(x, n, dim=axis))(k_cache, rep, axis=1)
        v = (lambda x, n, axis: torch.repeat_interleave(x, n, dim=axis))(v_cache, rep, axis=1)
        scores = torch.einsum("bhqd,bhkd->bhqk", q, k) * (Dh ** -0.5)
        p = _softmax(scores, axis=-1)
        o = torch.einsum("bhqk,bhkd->bhqd", p, v)
        return (lambda x, *d: x.permute(*d))(o, 0, 2, 1, 3).reshape(B, Sq, Hq * Dh) @ wo

    x = A_x
    g = _sigmoid((x * gate_w).sum(-1, keepdims=True))
    a = _A_ref(x, A_k_cache, A_v_cache, A_wq, A_wo)
    b = _B_ref(x, B_k_cache, B_v_cache, B_wq, B_wo)
    return g * a + (1 - g) * b
```

```python
import sys, struct

NAME = "gated_mix__gqa_block_cached__gqa_block_cached__decode"
HDR = open("cdna_kernels/%s.s.ref" % NAME).read().split("; Override launch geometry")[0]

WS_QP = 0x0
WS_OS = 0x20000
WS_YS = 0x120000
WS_TS = 0x140000
WS_SIZE = 0x180000
RING = 32768
AUX = 131072
QS = AUX + 28672
MX = QS + 1024
LX = MX + 128
OSB = LX + 128
LDS_SIZE = 163840
SENT = 0xFFFFFFFF
SPIN_CAP = 40000


def f2u(f):
    return struct.unpack("<I", struct.pack("<f", f))[0]


class E:
    def __init__(self):
        self.o = []

    def __call__(self, s):
        self.o.append("  " + s)

    def label(self, l):
        self.o.append(l + ":")

    def c(self, s):
        self.o.append("  ; " + s)


def vr(a, n):
    return f"v[{a}:{a+n-1}]"


def gen(ts=False, stag=5, nt=True):
    e = E()
    NT = " nt" if nt else ""
    sWAVE = "s3"
    sG, sJ, sBR, sH, sB, sS = "s4", "s5", "s6", "s7", "s26", "s27"
    SK, SV, SWQ, SWO, SWS, SDBG, SX, SOUT, SGW = ("s[28:31]", "s[32:35]", "s[36:39]", "s[40:43]", "s[44:47]",
                                                  "s[48:51]", "s[52:55]", "s[56:59]", "s[60:63]")
    sRING, sCUR, sT0, sT1, sT2, sT3 = "s64", "s65", "s66", "s67", "s68", "s69"
    sMISS, sSPIN, sC = "s70", "s71", "s72"
    sHH, sC7 = "s73", "s74"
    vLANE, vN, vGq = 1, 2, 3
    vT = list(range(4, 12))
    vDMA = 12
    vKA = 16
    vVA = 20
    vW = 28
    vST = 32
    vS = 64
    vQ = 128
    vWO = 160
    NVGPR = 192

    def stamp(i):
        if ts:
            e(f"s_memrealtime s[{76+2*i}:{77+2*i}]")

    A = e.o.append
    A(HDR.rstrip())
    A("; Override launch geometry by editing the next line (default: block=256,")
    A(f"; @launch grid=(256,1,1) block=(320,1,1) lds={LDS_SIZE}")
    A('.amdgcn_target "amdgcn-amd-amdhsa--gfx950"')
    A(".text")
    A(f".globl {NAME}_kernel")
    A(".p2align 8")
    A(f".type {NAME}_kernel,@function")
    A(f"{NAME}_kernel:")
    e("s_cmp_ge_u32 s2, 256")
    e("s_cbranch_scc1 L_end")
    e("s_and_b32 s66, s2, 7")
    e("s_lshr_b32 s67, s2, 3")
    e("s_lshr_b32 s6, s66, 2")
    e("s_mul_i32 s68, s6, 40")
    e("s_add_u32 s68, s68, 8")
    e("s_load_dwordx8 s[8:15], s[0:1], s68")
    e("s_load_dwordx8 s[16:23], s[0:1], 80")
    e("s_load_dwordx2 s[24:25], s[0:1], 0")
    stamp(0)
    e("s_and_b32 s69, s67, 1")
    e("s_lshl_b32 s4, s66, 1")
    e("s_add_u32 s4, s4, s69")
    e("s_lshr_b32 s5, s67, 1")
    e("s_and_b32 s7, s4, 7")
    e("s_lshr_b32 s26, s5, 3")
    e("s_and_b32 s27, s5, 7")
    e(f"v_lshrrev_b32 v4, 6, v0")
    e(f"v_and_b32 v{vLANE}, 63, v0")
    e("v_readfirstlane_b32 s3, v4")
    e(f"v_and_b32 v{vN}, 15, v{vLANE}")
    e(f"v_lshrrev_b32 v{vGq}, 4, v{vLANE}")
    e("s_and_b32 s73, s5, 1")
    e("s_lshr_b32 s74, s5, 1")
    e("s_cmp_eq_u32 s3, 4")
    e("s_cbranch_scc1 L_helper")

    e(f"v_lshrrev_b32 v4, 5, v{vLANE}")
    e(f"v_and_b32 v5, 31, v{vLANE}")
    for i in range(4):
        e(f"v_add_u32 v6, {2*i}, v4")
        e("v_lshlrev_b32 v6, 1, v6")
        e("v_xor_b32 v6, v6, v5")
        e("v_lshlrev_b32 v6, 4, v6")
        e(f"v_lshl_add_u32 v{vDMA+i}, v4, 9, v6")
    e(f"v_lshrrev_b32 v4, 3, v{vLANE}")
    e(f"v_and_b32 v5, 7, v{vLANE}")
    e(f"v_lshrrev_b32 v6, 4, v{vLANE}")
    e("v_lshlrev_b32 v6, 1, v6")
    e("v_xor_b32 v5, v5, v6")
    e("v_lshlrev_b32 v5, 4, v5")
    e(f"v_lshl_add_u32 v{vW}, v4, 13, v5")
    e("s_movk_i32 s66, 896")
    e(f"v_mad_u32_u24 v{vW+1}, v4, s66, v5")
    e(f"s_lshl_b32 {sRING}, {sWAVE}, 15")
    e("s_lshl_b32 s66, s2, 2")
    e(f"s_add_u32 s66, s66, {sWAVE}")
    e(f"s_mul_i32 s66, s66, {stag}")
    e("s_and_b32 s66, s66, 31")
    e(f"s_lshl_b32 {sCUR}, s66, 12")
    e(f"s_lshl_b32 s66, {sB}, 3")
    e(f"s_add_u32 s66, s66, {sH}")
    e("s_lshl_b32 s66, s66, 22")
    e(f"s_lshl_b32 s67, {sS}, 19")
    e("s_add_u32 s66, s66, s67")
    e(f"s_lshl_b32 s67, {sWAVE}, 17")
    e("s_add_u32 s66, s66, s67")
    e(f"s_mul_i32 s67, {sB}, 224")
    e(f"s_mul_i32 s68, {sWAVE}, 56")
    e("s_add_u32 s67, s67, s68")
    e("s_lshl_b32 s67, s67, 13")
    e(f"s_lshl_b32 s68, {sH}, 10")
    e("s_add_u32 s67, s67, s68")
    e(f"s_lshl_b32 s68, {sS}, 7")
    e("s_add_u32 s67, s67, s68")
    e(f"s_lshl_b32 s68, {sH}, 1")
    e(f"s_add_u32 s68, s68, {sHH}")
    e("s_lshl_b32 s68, s68, 8")
    e(f"s_lshl_b32 s69, {sWAVE}, 6")
    e("s_add_u32 s68, s68, s69")
    e("s_mul_i32 s68, s68, 896")
    e(f"s_lshl_b32 s69, {sC7}, 7")
    e("s_add_u32 s68, s68, s69")
    e(f"s_cmp_lt_u32 {sJ}, 14")
    e("s_cselect_b32 s68, s68, 0x40000000")
    e("s_waitcnt lgkmcnt(0)")
    stamp(1)
    e("s_add_u32 s28, s8, s66")
    e("s_addc_u32 s29, s9, 0")
    e("s_mov_b32 s30, 0x20000")
    e("s_mov_b32 s31, 0x00020000")
    e("s_mov_b32 s36, s12")
    e("s_mov_b32 s37, s13")
    e("s_mov_b32 s38, 3670016")
    e("s_mov_b32 s39, 0x00020000")
    e(f"s_mul_i32 s69, {sWAVE}, 7168")
    e(f"s_add_u32 s69, s69, {AUX}")
    for i in range(7):
        e(f"s_add_u32 m0, s69, {i*1024}" if i else "s_mov_b32 m0, s69")
        e(f"s_add_u32 s70, s67, {i*65536}")
        e(f"buffer_load_dwordx4 v{vW}, {SWQ}, s70 offen{NT} lds")
    e("s_mov_b32 s40, s14")
    e("s_mov_b32 s41, s15")
    e("s_mov_b32 s42, 3670016")
    e("s_mov_b32 s43, 0x00020000")
    for i in range(8):
        e(f"s_add_u32 m0, {sRING}, {24576 + i*1024}")
        e(f"s_add_u32 s70, s68, {i*8*896}")
        e(f"buffer_load_dwordx4 v{vW+1}, {SWO}, s70 offen{NT} lds")
    e("s_add_u32 s32, s10, s66")
    e("s_addc_u32 s33, s11, 0")
    e("s_mov_b32 s34, 0x20000")
    e("s_mov_b32 s35, 0x00020000")

    def issue_unit(k):
        srd = SK if k < 32 else SV
        slot = k % 8
        e(f"s_add_u32 m0, {sRING}, {slot*4096}")
        e("s_nop 0")
        for i in range(4):
            e(f"buffer_load_dwordx4 v{vDMA+i}, {srd}, {sCUR} offen offset:{i*1024}{NT} lds")
        e(f"s_add_u32 {sCUR}, {sCUR}, 4096")
        e(f"s_and_b32 {sCUR}, {sCUR}, 0x1ffff")

    for k in range(6):
        issue_unit(k)
    stamp(2)
    e(f"v_and_b32 v4, 7, v{vN}")
    e("v_lshlrev_b32 v4, 1, v4")
    e(f"v_lshlrev_b32 v5, 9, v{vN}")
    e(f"v_add_u32 v5, {sRING}, v5")
    for tt in range(4):
        e(f"v_add_u32 v6, {4*tt}, v{vGq}")
        e("v_xor_b32 v6, v6, v4")
        e(f"v_lshl_add_u32 v{vKA+tt}, v6, 4, v5")
    e(f"v_lshrrev_b32 v4, 2, v{vLANE}")
    e(f"v_and_b32 v5, 3, v{vLANE}")
    e("v_lshlrev_b32 v5, 3, v5")
    e(f"v_lshl_add_u32 v5, v4, 9, v5")
    e(f"v_add_u32 v5, {sRING}, v5")
    e("v_and_b32 v4, 7, v4")
    for d in range(8):
        e(f"v_xor_b32 v6, {d}, v4")
        e(f"v_lshl_add_u32 v{vVA+d}, v6, 5, v5")
    e("s_mov_b32 s44, s22")
    e("s_mov_b32 s45, s23")
    e(f"s_mov_b32 s46, {WS_SIZE}")
    e("s_mov_b32 s47, 0x00020000")
    e(f"s_mov_b32 {sC}, {f2u(1.4426950408889634/16.0)}")
    e("s_waitcnt vmcnt(32)")
    e("s_barrier")
    stamp(3)
    e("s_waitcnt vmcnt(24)")
    e("s_barrier")
    stamp(4)
    e(f"v_and_b32 v4, 1, v{vN}")
    e("v_lshlrev_b32 v4, 9, v4")
    e(f"v_lshl_add_u32 v4, v{vGq}, 4, v4")
    e(f"v_add_u32 v4, {QS}, v4")
    for t in range(8):
        e(f"ds_read_b128 {vr(vQ+4*t,4)}, v4 offset:{t*64}")
    e(f"v_bfe_u32 v5, v{vLANE}, 2, 2")
    e(f"v_lshl_add_u32 v5, v{vGq}, 3, v5")
    e(f"v_and_b32 v6, 3, v{vLANE}")
    e("v_lshlrev_b32 v6, 3, v6")
    e("v_lshl_add_u32 v6, v5, 7, v6")
    e("v_bfe_u32 v7, v5, 1, 2")
    e(f"v_xor_b32 v8, {sWAVE}, v7")
    e("v_lshl_add_u32 v8, v8, 5, v6")
    e("v_add_u32 v7, 2, v7")
    e("v_and_b32 v7, 3, v7")
    e(f"v_xor_b32 v9, {sWAVE}, v7")
    e("v_lshl_add_u32 v9, v9, 5, v6")
    e("v_add_u32 v9, 512, v9")
    for t in range(8):
        off = (t >> 1) * RING + 24576 + (t & 1) * 32 * 128
        if off > 65535:
            e(f"v_add_u32 v10, {off}, v8")
            e(f"v_add_u32 v11, {off}, v9")
            e(f"ds_read_b64_tr_b16 {vr(vWO+4*t,2)}, v10")
            e(f"ds_read_b64_tr_b16 {vr(vWO+4*t+2,2)}, v11")
        else:
            e(f"ds_read_b64_tr_b16 {vr(vWO+4*t,2)}, v8 offset:{off}")
            e(f"ds_read_b64_tr_b16 {vr(vWO+4*t+2,2)}, v9 offset:{off}")
    e("s_waitcnt lgkmcnt(0)")
    e("s_barrier")
    issue_unit(6)
    issue_unit(7)
    stamp(5)

    def vm_wait(i):
        issued = min(64, 2 * i + 8)
        return 4 * (issued - (2 * i + 2))

    for i in range(16):
        tb = ((2 * i) % 8) * 4096
        e(f"s_waitcnt vmcnt({vm_wait(i)})")
        for t in range(8):
            e(f"ds_read_b128 {vr(vST+4*t,4)}, v{vKA+(t&3)} offset:{tb + (t>>2)*256}")
        for t in range(8):
            e(f"s_waitcnt lgkmcnt({7-t})")
            cc = "0" if t == 0 else vr(vS + 4 * i, 4)
            e(f"v_mfma_f32_16x16x32_bf16 {vr(vS+4*i,4)}, {vr(vST+4*t,4)}, {vr(vQ+4*t,4)}, {cc}")
        issue_unit(2 * i + 8)
        issue_unit(2 * i + 9)
    stamp(6)
    e("s_nop 7")
    e("s_nop 1")
    e(f"v_max3_f32 v4, v{vS}, v{vS+1}, v{vS+2}")
    k = 3
    while k + 1 < 64:
        e(f"v_max3_f32 v4, v4, v{vS+k}, v{vS+k+1}")
        k += 2
    e(f"v_max_f32 v4, v4, v{vS+63}")
    e(f"v_and_b32 v5, 1, v{vN}")
    e("v_lshlrev_b32 v5, 6, v5")
    e(f"v_lshl_add_u32 v6, v{vGq}, 2, v5")
    e(f"s_lshl_b32 s66, {sWAVE}, 4")
    e(f"s_add_u32 s66, s66, {MX}")
    e("v_add_u32 v6, s66, v6")
    e("ds_write_b32 v6, v4")
    e(f"v_add_u32 v30, {MX}, v5")
    e("s_waitcnt lgkmcnt(0)")
    e("s_barrier")
    for q in range(4):
        e(f"ds_read_b128 {vr(vST+4*q,4)}, v30 offset:{q*16}")
    e("s_waitcnt lgkmcnt(0)")
    e(f"v_max3_f32 v4, v{vST}, v{vST+1}, v{vST+2}")
    for k in range(3, 15, 2):
        e(f"v_max3_f32 v4, v4, v{vST+k}, v{vST+k+1}")
    e(f"v_max_f32 v4, v4, v{vST+15}")
    e(f"v_mul_f32 v31, {sC}, v4")
    for k in range(64):
        e(f"v_fma_f32 v{vS+k}, v{vS+k}, {sC}, -v31")
    for k in range(64):
        e(f"v_exp_f32 v{vS+k}, v{vS+k}")
    e("s_nop 0")
    e(f"v_add_f32 v4, v{vS}, v{vS+1}")
    e(f"v_add_f32 v5, v{vS+2}, v{vS+3}")
    for k in range(4, 64, 2):
        e(f"v_add_f32 v4, v4, v{vS+k}")
        e(f"v_add_f32 v5, v5, v{vS+k+1}")
    e("v_add_f32 v4, v4, v5")
    e(f"ds_write_b32 v6, v4 offset:{LX-MX}")
    for i in range(16):
        e(f"v_cvt_pk_bf16_f32 v{vQ+2*i}, v{vS+4*i}, v{vS+4*i+1}")
        e(f"v_cvt_pk_bf16_f32 v{vQ+2*i+1}, v{vS+4*i+2}, v{vS+4*i+3}")
    stamp(7)
    for i in range(16):
        gi = 16 + i
        tb = ((2 * gi) % 8) * 4096
        e(f"s_waitcnt vmcnt({vm_wait(gi)})")
        for d in range(16):
            e(f"ds_read_b64_tr_b16 {vr(vST+2*d,2)}, v{vVA+(d&7)} offset:{tb + (d>>3)*256}")
        for d in range(16):
            if d % 2 == 0:
                e(f"s_waitcnt lgkmcnt({14-d})")
            cc = "0" if i == 0 else vr(vS + 4 * d, 4)
            e(f"v_mfma_f32_16x16x16_bf16 {vr(vS+4*d,4)}, {vr(vST+2*d,2)}, {vr(vQ+2*i,2)}, {cc}")
        if 2 * gi + 8 < 64:
            issue_unit(2 * gi + 8)
            issue_unit(2 * gi + 9)
    stamp(8)
    e(f"v_lshlrev_b32 v4, 10, v{vN}")
    e(f"v_lshl_add_u32 v4, v{vGq}, 4, v4")
    e(f"v_add_u32 v4, {sRING}, v4")
    e(f"v_cmp_gt_u32 vcc, 2, v{vN}")
    e("s_and_saveexec_b64 s[66:67], vcc")
    e("s_nop 7")
    for d in range(16):
        e(f"ds_write_b128 v4, {vr(vS+4*d,4)} offset:{d*64}")
    e("s_mov_b64 exec, s[66:67]")
    e("v_lshrrev_b32 v5, 7, v0")
    e("v_and_b32 v6, 127, v0")
    e("v_lshlrev_b32 v7, 10, v5")
    e("v_lshl_add_u32 v7, v6, 3, v7")
    e("v_lshlrev_b32 v8, 6, v5")
    e(f"v_add_u32 v8, {MX}, v8")
    e("s_waitcnt lgkmcnt(0)")
    e("s_barrier")
    e(f"ds_read_b64 {vr(vST,2)}, v7")
    e(f"ds_read_b64 {vr(vST+2,2)}, v7 offset:{RING}")
    e(f"v_add_u32 v9, {2*RING}, v7")
    e(f"ds_read_b64 {vr(vST+4,2)}, v9")
    e(f"ds_read_b64 {vr(vST+6,2)}, v9 offset:{RING}")
    for q in range(4):
        e(f"ds_read_b128 {vr(vST+8+4*q,4)}, v8 offset:{q*16}")
    for q in range(4):
        e(f"ds_read_b128 {vr(vQ+4*q,4)}, v8 offset:{LX-MX+q*16}")
    e("s_waitcnt lgkmcnt(0)")
    e(f"v_add_f32 v12, v{vST}, v{vST+2}")
    e(f"v_add_f32 v13, v{vST+1}, v{vST+3}")
    e(f"v_add_f32 v10, v{vST+4}, v{vST+6}")
    e(f"v_add_f32 v11, v{vST+5}, v{vST+7}")
    e("v_add_f32 v12, v12, v10")
    e("v_add_f32 v13, v13, v11")
    m0 = vST + 8
    e(f"v_max3_f32 v14, v{m0}, v{m0+1}, v{m0+2}")
    for k in range(3, 15, 2):
        e(f"v_max3_f32 v14, v14, v{m0+k}, v{m0+k+1}")
    e(f"v_max_f32 v14, v14, v{m0+15}")
    e(f"v_mul_f32 v14, {sC}, v14")
    e(f"v_add_f32 v15, v{vQ}, v{vQ+1}")
    e(f"v_add_f32 v10, v{vQ+2}, v{vQ+3}")
    for k in range(4, 16, 2):
        e(f"v_add_f32 v15, v15, v{vQ+k}")
        e(f"v_add_f32 v10, v10, v{vQ+k+1}")
    e("v_add_f32 v15, v15, v10")
    e("v_mov_b32 v10, 0xfffffffe")
    for r_ in (12, 13, 14, 15):
        e(f"v_min_u32 v{r_}, v{r_}, v10")
    e(f"s_lshl_b32 s66, {sG}, 1")
    e(f"s_add_u32 s66, s66, {sB}")
    e("s_lshl_b32 s66, s66, 3")
    e(f"s_add_u32 s66, s66, {sS}")
    e("s_lshl_b32 s66, s66, 12")
    e(f"s_add_u32 s66, s66, {WS_OS}")
    e("v_lshlrev_b32 v4, 4, v0")
    e(f"buffer_store_dwordx4 v[12:15], v4, {SWS}, s66 offen sc1")
    stamp(9)
    e(f"s_cmp_ge_u32 {sJ}, 14")
    e("s_cbranch_scc1 L_final")
    e("v_lshlrev_b32 v4, 15, v5")
    e("v_lshl_add_u32 v4, v6, 4, v4")
    e(f"s_lshl_b32 s66, {sHH}, 11")
    e(f"s_lshl_b32 s67, {sG}, 16")
    e("s_add_u32 s66, s66, s67")
    e(f"s_add_u32 s66, s66, {WS_OS}")
    e(f"s_mov_b32 {sMISS}, 0xff")
    e(f"s_mov_b32 {sSPIN}, 0")
    e.label("L_h1poll")
    for s_ in range(8):
        e(f"s_bitcmp1_b32 {sMISS}, {s_}")
        e(f"s_cbranch_scc0 L_h1skip{s_}")
        e(f"s_add_u32 s67, s66, {s_*4096}")
        e(f"buffer_load_dwordx4 {vr(vS+4*s_,4)}, v4, {SWS}, s67 offen sc1")
        e.label(f"L_h1skip{s_}")
    e("s_waitcnt vmcnt(0)")
    for s_ in range(8):
        e(f"s_bitcmp1_b32 {sMISS}, {s_}")
        e(f"s_cbranch_scc0 L_h1chk{s_}")
        e(f"v_max3_u32 v7, v{vS+4*s_}, v{vS+4*s_+1}, v{vS+4*s_+2}")
        e(f"v_max_u32 v7, v7, v{vS+4*s_+3}")
        e("v_cmp_eq_u32 vcc, -1, v7")
        e(f"s_cmp_eq_u64 vcc, 0")
        e(f"s_cbranch_scc0 L_h1chk{s_}")
        e(f"s_bitset0_b32 {sMISS}, {s_}")
        e.label(f"L_h1chk{s_}")
    e(f"s_cmp_eq_u32 {sMISS}, 0")
    e("s_cbranch_scc1 L_h1done")
    e(f"s_add_u32 {sSPIN}, {sSPIN}, 1")
    e(f"s_cmp_lt_u32 {sSPIN}, {SPIN_CAP}")
    e("s_cbranch_scc1 L_h1poll")
    e.label("L_h1done")
    stamp(10)
    e(f"v_max3_f32 v7, v{vS+2}, v{vS+6}, v{vS+10}")
    e(f"v_max3_f32 v7, v7, v{vS+14}, v{vS+18}")
    e(f"v_max3_f32 v7, v7, v{vS+22}, v{vS+26}")
    e(f"v_max_f32 v7, v7, v{vS+30}")
    for s_ in range(8):
        e(f"v_sub_f32 v{vS+4*s_+2}, v{vS+4*s_+2}, v7")
    for s_ in range(8):
        e(f"v_exp_f32 v{vS+4*s_+2}, v{vS+4*s_+2}")
    e("s_nop 0")
    e(f"v_mul_f32 v8, v{vS+2}, v{vS}")
    e(f"v_mul_f32 v9, v{vS+2}, v{vS+1}")
    e(f"v_mul_f32 v10, v{vS+2}, v{vS+3}")
    for s_ in range(1, 8):
        e(f"v_fmac_f32 v8, v{vS+4*s_+2}, v{vS+4*s_}")
        e(f"v_fmac_f32 v9, v{vS+4*s_+2}, v{vS+4*s_+1}")
        e(f"v_fmac_f32 v10, v{vS+4*s_+2}, v{vS+4*s_+3}")
    e("v_rcp_f32 v10, v10")
    e("s_nop 0")
    e("v_mul_f32 v8, v8, v10")
    e("v_mul_f32 v9, v9, v10")
    e("v_cvt_pk_bf16_f32 v8, v8, v9")
    e("v_lshlrev_b32 v9, 9, v5")
    e("v_lshl_add_u32 v9, v6, 2, v9")
    e(f"v_add_u32 v9, {OSB}, v9")
    e("ds_write_b32 v9, v8")
    e(f"v_and_b32 v4, 1, v{vN}")
    e("v_lshlrev_b32 v4, 9, v4")
    e(f"v_lshl_add_u32 v4, v{vGq}, 4, v4")
    e(f"v_add_u32 v4, {OSB}, v4")
    e("s_waitcnt lgkmcnt(0)")
    e("s_barrier")
    for t in range(8):
        e(f"ds_read_b128 {vr(vST+4*t,4)}, v4 offset:{t*64}")
    for t in range(8):
        e(f"s_waitcnt lgkmcnt({7-t})")
        cc = "0" if t == 0 else vr(vS, 4)
        e(f"v_mfma_f32_16x16x32_bf16 {vr(vS,4)}, {vr(vWO+4*t,4)}, {vr(vST+4*t,4)}, {cc}")
    e(f"v_lshlrev_b32 v4, 8, v{vN}")
    e(f"v_lshl_add_u32 v4, v{vGq}, 4, v4")
    e(f"s_lshl_b32 s66, {sG}, 1")
    e(f"s_add_u32 s66, s66, {sHH}")
    e("s_lshl_b32 s66, s66, 9")
    e(f"s_lshl_b32 s67, {sC7}, 14")
    e("s_add_u32 s66, s66, s67")
    e(f"s_lshl_b32 s67, {sWAVE}, 6")
    e("s_add_u32 s66, s66, s67")
    e(f"s_add_u32 s66, s66, {WS_YS}")
    e("v_mov_b32 v10, 0xfffffffe")
    e(f"v_cmp_gt_u32 vcc, 2, v{vN}")
    e("s_and_saveexec_b64 s[68:69], vcc")
    e("s_nop 4")
    for r_ in range(4):
        e(f"v_min_u32 v{vS+r_}, v{vS+r_}, v10")
    e(f"buffer_store_dwordx4 {vr(vS,4)}, v4, {SWS}, s66 offen sc1")
    stamp(11)
    if ts:
        e("s_mov_b64 exec, s[68:69]")
        e("s_branch L_ts")
    e("s_endpgm")

    e.label("L_final")
    e(f"s_lshl_b32 s66, {sG}, 1")
    e(f"s_add_u32 s66, s66, {sJ}")
    e("s_sub_u32 s66, s66, 14")
    e("s_cmp_ge_u32 s66, 14")
    e("s_cbranch_scc1 L_fin_exit")
    e("s_lshr_b32 s74, s66, 1")
    e("s_and_b32 s73, s66, 1")
    e("s_mul_i32 s66, s73, 896")
    e("s_add_u32 s52, s24, s66")
    e("s_addc_u32 s53, s25, 0")
    e("s_movk_i32 s54, 896")
    e("s_mov_b32 s55, 0x00020000")
    e("s_mov_b32 s60, s16")
    e("s_mov_b32 s61, s17")
    e("s_movk_i32 s62, 896")
    e("s_mov_b32 s63, 0x00020000")
    e("s_mov_b32 s56, s18")
    e("s_mov_b32 s57, s19")
    e("s_movk_i32 s58, 1792")
    e("s_mov_b32 s59, 0x00020000")
    e("s_mov_b32 s48, s20")
    e("s_mov_b32 s49, s21")
    e("s_movk_i32 s50, 256")
    e("s_mov_b32 s51, 0x00020000")
    e(f"v_lshlrev_b32 v4, 4, v{vLANE}")
    e(f"buffer_load_dwordx4 {vr(vST,4)}, v4, {SGW}, 0 offen")
    e(f"buffer_load_dwordx4 {vr(vST+4,4)}, v4, {SX}, 0 offen")
    e(f"v_lshlrev_b32 v5, 2, v{vLANE}")
    e(f"buffer_load_dword v6, v5, {SDBG}, 0 offen sc1")
    e("s_waitcnt vmcnt(1)")
    e("v_mov_b32 v7, 0")
    for k in range(4):
        e(f"v_lshlrev_b32 v8, 16, v{vST+k}")
        e(f"v_lshlrev_b32 v9, 16, v{vST+4+k}")
        e(f"v_and_b32 v10, 0xffff0000, v{vST+k}")
        e(f"v_and_b32 v11, 0xffff0000, v{vST+4+k}")
        e("v_mul_f32 v8, v8, v9")
        e("v_mul_f32 v10, v10, v11")
        e("v_cvt_pk_bf16_f32 v8, v8, v10")
        e("v_lshlrev_b32 v9, 16, v8")
        e("v_and_b32 v8, 0xffff0000, v8")
        e("v_add_f32 v7, v7, v9")
        e("v_add_f32 v7, v7, v8")
    e(f"v_lshlrev_b32 v8, 2, v{vLANE}")
    for m_ in (1, 2, 4, 8, 16, 32):
        e(f"v_xor_b32 v9, {m_*4}, v8")
        e("ds_bpermute_b32 v10, v9, v7")
        e("s_waitcnt lgkmcnt(0)")
        e("v_add_f32 v7, v7, v10")
    e("v_cvt_pk_bf16_f32 v7, v7, v7")
    e("v_lshlrev_b32 v7, 16, v7")
    e(f"v_mul_f32 v8, {f2u(-1.4426950408889634)}, v7")
    e("v_exp_f32 v8, v8")
    e("s_nop 0")
    e("v_add_f32 v8, 1.0, v8")
    e("v_rcp_f32 v8, v8")
    e("s_nop 0")
    e("v_cvt_pk_bf16_f32 v8, v8, v8")
    e("v_lshlrev_b32 v30, 16, v8")
    e("v_sub_f32 v9, 1.0, v30")
    e("v_cvt_pk_bf16_f32 v9, v9, v9")
    e("v_lshlrev_b32 v31, 16, v9")
    e(f"s_mov_b32 {sSPIN}, 0")
    e.label("L_fflag")
    e("s_waitcnt vmcnt(0)")
    e("v_cmp_ne_u32 vcc, 0x01010101, v6")
    e("s_cmp_eq_u64 vcc, 0")
    e("s_cbranch_scc1 L_fflag_ok")
    e(f"buffer_load_dword v6, v5, {SDBG}, 0 offen sc1")
    e(f"s_add_u32 {sSPIN}, {sSPIN}, 1")
    e(f"s_cmp_lt_u32 {sSPIN}, {SPIN_CAP}")
    e("s_cbranch_scc1 L_fflag")
    e.label("L_fflag_ok")
    e(f"v_lshlrev_b32 v4, 9, v{vGq}")
    e(f"v_lshl_add_u32 v4, v{vN}, 2, v4")
    e("s_lshl_b32 s66, s74, 14")
    e("s_lshl_b32 s67, s73, 8")
    e("s_add_u32 s66, s66, s67")
    e(f"s_lshl_b32 s67, {sWAVE}, 6")
    e("s_add_u32 s66, s66, s67")
    e(f"s_add_u32 s66, s66, {WS_YS}")
    e(f"s_mov_b32 {sMISS}, 0xff")
    e(f"s_mov_b32 {sSPIN}, 0")
    e.label("L_h2poll")
    for i in range(8):
        e(f"s_bitcmp1_b32 {sMISS}, {i}")
        e(f"s_cbranch_scc0 L_h2skip{i}")
        e(f"s_add_u32 s67, s66, {i*2048}")
        e(f"buffer_load_dword v{vS+i}, v4, {SWS}, s67 offen sc1")
        e.label(f"L_h2skip{i}")
    e("s_waitcnt vmcnt(0)")
    for i in range(8):
        e(f"s_bitcmp1_b32 {sMISS}, {i}")
        e(f"s_cbranch_scc0 L_h2chk{i}")
        e(f"v_cmp_eq_u32 vcc, -1, v{vS+i}")
        e(f"s_cmp_eq_u64 vcc, 0")
        e(f"s_cbranch_scc0 L_h2chk{i}")
        e(f"s_bitset0_b32 {sMISS}, {i}")
        e.label(f"L_h2chk{i}")
    e(f"s_cmp_eq_u32 {sMISS}, 0")
    e("s_cbranch_scc1 L_h2done")
    e(f"s_add_u32 {sSPIN}, {sSPIN}, 1")
    e(f"s_cmp_lt_u32 {sSPIN}, {SPIN_CAP}")
    e("s_cbranch_scc1 L_h2poll")
    e.label("L_h2done")
    stamp(10)
    e(f"v_add_f32 v8, v{vS}, v{vS+1}")
    e(f"v_add_f32 v9, v{vS+2}, v{vS+3}")
    e(f"v_add_f32 v10, v{vS+4}, v{vS+5}")
    e(f"v_add_f32 v11, v{vS+6}, v{vS+7}")
    e("v_add_f32 v8, v8, v9")
    e("v_add_f32 v10, v10, v11")
    e("v_mul_f32 v8, v8, v30")
    e("v_fmac_f32 v8, v10, v31")
    e(f"v_lshlrev_b32 v9, 2, v{vLANE}")
    for m_ in (16, 32):
        e(f"v_xor_b32 v10, {m_*4}, v9")
        e("ds_bpermute_b32 v11, v10, v8")
        e("s_waitcnt lgkmcnt(0)")
        e("v_add_f32 v8, v8, v11")
    e("v_cvt_pk_bf16_f32 v8, v8, v8")
    e("s_mul_i32 s66, s73, 896")
    e("s_lshl_b32 s67, s74, 7")
    e("s_add_u32 s66, s66, s67")
    e(f"s_lshl_b32 s67, {sWAVE}, 5")
    e("s_add_u32 s66, s66, s67")
    e(f"v_lshlrev_b32 v4, 1, v{vN}")
    e(f"v_cmp_gt_u32 vcc, 16, v{vLANE}")
    e("s_and_saveexec_b64 s[68:69], vcc")
    e(f"buffer_store_short v8, v4, {SOUT}, s66 offen")
    stamp(11)
    if ts:
        e("s_mov_b64 exec, s[68:69]")
        e("s_branch L_ts")
    e.label("L_fin_exit")
    if ts:
        e("s_branch L_ts")
    e("s_endpgm")

    e.label("L_helper")
    e(f"v_and_b32 v4, 1, v{vN}")
    e("s_movk_i32 s66, 896")
    e("v_mul_lo_u32 v4, v4, s66")
    e(f"v_lshl_add_u32 v4, v{vGq}, 4, v4")
    e(f"s_mul_i32 s67, {sB}, 448")
    e(f"v_lshlrev_b32 v5, 4, v{vLANE}")
    e("v_mov_b32 v8, -1")
    e("v_mov_b32 v9, -1")
    e("v_mov_b32 v10, -1")
    e("v_mov_b32 v11, -1")
    e(f"s_lshl_b32 s68, {sG}, 1")
    e(f"s_add_u32 s68, s68, {sB}")
    e("s_lshl_b32 s68, s68, 3")
    e(f"s_add_u32 s68, s68, {sS}")
    e("s_lshl_b32 s68, s68, 12")
    e(f"s_add_u32 s68, s68, {WS_OS}")
    e(f"s_lshl_b32 s69, {sG}, 1")
    e(f"s_add_u32 s69, s69, {sHH}")
    e("s_lshl_b32 s69, s69, 9")
    e(f"s_lshl_b32 s70, {sC7}, 14")
    e("s_add_u32 s69, s69, s70")
    e(f"s_add_u32 s69, s69, {WS_YS}")
    e(f"s_cmp_lt_u32 {sJ}, 14")
    e("s_cselect_b32 s69, s69, 0x40000000")
    e(f"v_bfe_u32 v12, v{vLANE}, 2, 2")
    e(f"v_lshl_add_u32 v12, v{vGq}, 3, v12")
    e(f"v_and_b32 v13, 3, v{vLANE}")
    e("v_lshlrev_b32 v13, 3, v13")
    e("v_lshl_add_u32 v13, v12, 7, v13")
    e(f"v_add_u32 v13, {AUX}, v13")
    e("v_bfe_u32 v14, v12, 1, 2")
    e("v_add_u32 v15, 2, v14")
    e("v_and_b32 v15, 3, v15")
    for ct in range(4):
        e(f"v_xor_b32 v6, {ct}, v14")
        e(f"v_lshl_add_u32 v{16+ct}, v6, 5, v13")
        e(f"v_xor_b32 v6, {ct}, v15")
        e(f"v_lshl_add_u32 v6, v6, 5, v13")
        e(f"v_add_u32 v{20+ct}, 512, v6")
    e("s_waitcnt lgkmcnt(0)")
    stamp(1)
    e("s_mov_b32 s52, s24")
    e("s_mov_b32 s53, s25")
    e("s_movk_i32 s54, 1792")
    e("s_mov_b32 s55, 0x00020000")
    e("s_mov_b32 s44, s22")
    e("s_mov_b32 s45, s23")
    e(f"s_mov_b32 s46, {WS_SIZE}")
    e("s_mov_b32 s47, 0x00020000")
    e("s_mov_b32 s48, s20")
    e("s_mov_b32 s49, s21")
    e("s_movk_i32 s50, 256")
    e("s_mov_b32 s51, 0x00020000")
    XF = 32
    for t in range(7):
        e(f"buffer_load_dwordx4 {vr(XF+4*t,4)}, v4, {SX}, s67 offen offset:{t*64}")
    for q in range(4):
        e(f"buffer_store_dwordx4 v[8:11], v5, {SWS}, s68 offen offset:{q*1024} sc1")
    e(f"v_cmp_gt_u32 vcc, 32, v{vLANE}")
    e("s_and_saveexec_b64 s[70:71], vcc")
    e(f"buffer_store_dwordx4 v[8:11], v5, {SWS}, s69 offen sc1")
    e("s_mov_b64 exec, s[70:71]")
    e("s_waitcnt vmcnt(5)")
    e("s_barrier")
    stamp(3)
    WF = 64
    ACC = 96
    for ct in range(4):
        for t in range(7):
            e(f"ds_read_b64_tr_b16 {vr(WF+28*(ct&1)+4*t,2)}, v{16+ct} offset:{t*4096}")
            e(f"ds_read_b64_tr_b16 {vr(WF+28*(ct&1)+4*t+2,2)}, v{20+ct} offset:{t*4096}")
        for t in range(7):
            e(f"s_waitcnt lgkmcnt({12-2*t})")
            cc = "0" if t == 0 else vr(120 + 4 * ct, 4)
            e(f"v_mfma_f32_16x16x32_bf16 {vr(120+4*ct,4)}, {vr(WF+28*(ct&1)+4*t,4)}, {vr(XF+4*t,4)}, {cc}")
    e(f"v_lshlrev_b32 v6, 11, v{vN}")
    e(f"v_lshl_add_u32 v6, v{vGq}, 4, v6")
    e(f"s_lshl_b32 s66, {sG}, 13")
    e(f"s_lshl_b32 s67, {sB}, 12")
    e("s_add_u32 s66, s66, s67")
    e(f"s_lshl_b32 s67, {sS}, 8")
    e("s_add_u32 s66, s66, s67")
    if WS_QP:
        e(f"s_add_u32 s66, s66, {WS_QP}")
    e(f"v_cmp_gt_u32 vcc, 2, v{vN}")
    e("s_and_saveexec_b64 s[70:71], vcc")
    e("s_nop 7")
    for ct in range(4):
        e(f"buffer_store_dwordx4 {vr(120+4*ct,4)}, v6, {SWS}, s66 offen offset:{ct*64} sc1")
    e("s_mov_b64 exec, s[70:71]")
    e("s_waitcnt vmcnt(0)")
    stamp(6)
    e(f"s_lshl_b32 s66, {sG}, 4")
    e(f"s_add_u32 s67, s66, {sJ}")
    e("v_mov_b32 v6, s67")
    e("v_mov_b32 v7, 1")
    e(f"v_cmp_eq_u32 vcc, 0, v{vLANE}")
    e("s_and_saveexec_b64 s[70:71], vcc")
    e(f"buffer_store_byte v7, v6, {SDBG}, 0 offen sc1")
    e("s_mov_b64 exec, s[70:71]")
    e("v_mov_b32 v6, s66")
    e(f"s_mov_b32 {sSPIN}, 0")
    e.label("L_qpoll")
    e(f"buffer_load_dwordx4 v[8:11], v6, {SDBG}, 0 offen sc1")
    e("s_waitcnt vmcnt(0)")
    e("v_and_b32 v8, v8, v9")
    e("v_and_b32 v10, v10, v11")
    e("v_and_b32 v8, v8, v10")
    e("v_cmp_ne_u32 vcc, 0x01010101, v8")
    e("s_cmp_eq_u64 vcc, 0")
    e("s_cbranch_scc1 L_qready")
    e(f"s_add_u32 {sSPIN}, {sSPIN}, 1")
    e(f"s_cmp_lt_u32 {sSPIN}, {SPIN_CAP}")
    e("s_cbranch_scc1 L_qpoll")
    e.label("L_qready")
    stamp(7)
    e(f"v_lshlrev_b32 v6, 5, v{vLANE}")
    e(f"s_lshl_b32 s66, {sG}, 13")
    e(f"s_lshl_b32 s67, {sB}, 11")
    e("s_add_u32 s66, s66, s67")
    if WS_QP:
        e(f"s_add_u32 s66, s66, {WS_QP}")
    e("s_add_u32 s67, s66, 4096")
    e(f"buffer_load_dwordx4 v[32:35], v6, {SWS}, s66 offen sc1")
    e(f"buffer_load_dwordx4 v[36:39], v6, {SWS}, s66 offen offset:16 sc1")
    e(f"buffer_load_dwordx4 v[40:43], v6, {SWS}, s67 offen sc1")
    e(f"buffer_load_dwordx4 v[44:47], v6, {SWS}, s67 offen offset:16 sc1")
    e(f"v_lshlrev_b32 v7, 4, v{vLANE}")
    e(f"v_add_u32 v7, {QS}, v7")
    e("s_waitcnt vmcnt(0)")
    for k in range(8):
        e(f"v_add_f32 v{32+k}, v{32+k}, v{40+k}")
    for k in range(4):
        e(f"v_cvt_pk_bf16_f32 v{48+k}, v{32+2*k}, v{33+2*k}")
    e("ds_write_b128 v7, v[48:51]")
    e("s_waitcnt lgkmcnt(0)")
    e("s_barrier")
    stamp(8)
    e("s_barrier")
    if ts:
        e("s_branch L_ts")
    e("s_endpgm")

    if ts:
        e.label("L_ts")
        e("s_waitcnt lgkmcnt(0)")
        e("s_mov_b32 s44, s22")
        e("s_mov_b32 s45, s23")
        e(f"s_mov_b32 s46, {WS_SIZE}")
        e("s_mov_b32 s47, 0x00020000")
        e("s_mul_i32 s66, s2, 5")
        e("s_add_u32 s66, s66, s3")
        e("s_lshl_b32 s66, s66, 6")
        e(f"s_add_u32 s66, s66, {WS_TS}")
        e("v_mov_b32 v4, s66")
        e(f"v_cmp_eq_u32 vcc, 0, v{vLANE}")
        e("s_and_saveexec_b64 s[68:69], vcc")
        for i in range(12):
            e(f"v_mov_b32 v5, s{76+2*i}")
            e(f"buffer_store_dword v5, v4, {SWS}, 0 offen offset:{4*i}")
        e("s_endpgm")
    e.label("L_end")
    e("s_endpgm")
    A('.section .rodata,"a"')
    A(".p2align 6")
    A(f".amdhsa_kernel {NAME}_kernel")
    A(f"  .amdhsa_next_free_vgpr {NVGPR}")
    A("  .amdhsa_next_free_sgpr 102")
    A(f"  .amdhsa_accum_offset {NVGPR}")
    A("  .amdhsa_group_segment_fixed_size 0")
    A("  .amdhsa_kernarg_size 112")
    A("  .amdhsa_user_sgpr_count 2")
    A("  .amdhsa_user_sgpr_kernarg_segment_ptr 1")
    A("  .amdhsa_system_sgpr_workgroup_id_x 1")
    A(".end_amdhsa_kernel")
    return "\n".join(e.o) + "\n"


if __name__ == "__main__":
    out = sys.argv[1] if len(sys.argv) > 1 else "k1.s"
    open(out, "w").write(gen(ts="ts" in sys.argv[2:]))
```

```python
import sys, struct

NAME = "gated_mix__gqa_block_cached__gqa_block_cached__decode"
HDR = open("cdna_kernels/%s.s.ref" % NAME).read().split("; Override launch geometry")[0]

WS_EP = 0x0
WS_XT = 0x1000
WS_QP = 0x40000
WS_QA = 0x60000
WS_XA = 0x2000
WS_OB = 0x80000
WS_OA = 0x180000
WS_YS = 0x280000
WS_TS = 0x2A0000
WS_SIZE = 0x2C0000
RING = 32768
AUX = 131072
QS = AUX + 28672
MX = QS + 1024
XM = MX + 64
LX = MX + 128
OSB = LX + 128
OPART = AUX
LDS_SIZE = 163840
SPIN_CAP = 40000


def f2u(f):
    return struct.unpack("<I", struct.pack("<f", f))[0]


class E:
    def __init__(self):
        self.o = []
        self.q = []

    def __call__(self, s):
        self.o.append("  " + s)

    def label(self, l):
        self.o.append(l + ":")

    def vm(self, s, tag):
        self.o.append("  " + s)
        self.q.append(tag)

    def wait_tag(self, *tags):
        idx = max((i for i, t in enumerate(self.q) if t in tags), default=-1)
        if idx < 0:
            return
        n = len(self.q) - 1 - idx
        self.wait_n(n)

    def wait_n(self, n):
        if n >= len(self.q):
            return
        self.o.append(f"  s_waitcnt vmcnt({min(n, 63)})")
        self.q = self.q[len(self.q) - n:] if n else []


def vr(a, n):
    return f"v[{a}:{a+n-1}]"


def gen(ts=False, stag=5, nt=True, apath=True, ni=10, quantum=2, qa_rounds=4, deep_pre=1, deep_from=99, ni_deep=32, b0=1, mapping=0):
    e = E()
    NT = " nt" if nt else ""
    sWAVE = "s3"
    sG, sJ, sBR, sH, sB, sS = "s4", "s5", "s6", "s7", "s26", "s27"
    SK, SV, SWQ, SWO, SWS, SDBG, SX, SOUT, SGW = ("s[28:31]", "s[32:35]", "s[36:39]", "s[40:43]", "s[44:47]",
                                                  "s[48:51]", "s[52:55]", "s[56:59]", "s[60:63]")
    sRING, sROT = "s64", "s65"
    sMISS, sSPIN, sC = "s70", "s71", "s72"
    sHH, sC7, sXM = "s73", "s74", "s75"
    vLANE, vN, vGq = 1, 2, 3
    vDMA = 12
    vKA = 16
    vVA = 20
    vW = 28
    vM, vL = 30, 31
    vST = 32
    vS = 64
    vQ = 128
    vWO = 160
    vR0, vR1 = 192, 224
    vR2 = vS + 32
    NVGPR = 256

    def stamp(i):
        if ts:
            e(f"s_memrealtime s[{76+2*i}:{77+2*i}]")

    A = e.o.append
    A(HDR.rstrip())
    A("; Override launch geometry by editing the next line (default: block=256,")
    A(f"; @launch grid=(256,1,1) block=(320,1,1) lds={LDS_SIZE}")
    A('.amdgcn_target "amdgcn-amd-amdhsa--gfx950"')
    A(".text")
    A(f".globl {NAME}_kernel")
    A(".p2align 8")
    A(f".type {NAME}_kernel,@function")
    A(f"{NAME}_kernel:")
    e("s_cmp_ge_u32 s2, 256")
    e("s_cbranch_scc1 L_end")
    e("s_and_b32 s66, s2, 7")
    e("s_lshr_b32 s67, s2, 3")
    if mapping == 0:
        e("s_lshr_b32 s6, s66, 2")
    else:
        e("s_lshr_b32 s6, s2, 7")
    e("s_mul_i32 s68, s6, 40")
    e("s_add_u32 s68, s68, 8")
    e("s_load_dwordx8 s[8:15], s[0:1], s68")
    e("s_load_dwordx8 s[16:23], s[0:1], 80")
    e("s_load_dwordx2 s[24:25], s[0:1], 0")
    stamp(0)
    if mapping == 0:
        e("s_and_b32 s69, s67, 1")
        e("s_lshl_b32 s4, s66, 1")
        e("s_add_u32 s4, s4, s69")
        e("s_lshr_b32 s5, s67, 1")
        e("s_and_b32 s7, s4, 7")
        e("s_lshr_b32 s26, s5, 3")
        e("s_and_b32 s27, s5, 7")
    else:
        e("s_lshr_b32 s4, s67, 1")
        e("s_and_b32 s26, s67, 1")
        e("s_lshl_b32 s5, s66, 1")
        e("s_add_u32 s5, s5, s26")
        e("s_and_b32 s7, s4, 7")
        e("s_add_u32 s27, s66, s4")
        e("s_and_b32 s27, s27, 7")
    e(f"v_lshrrev_b32 v4, 6, v0")
    e(f"v_and_b32 v{vLANE}, 63, v0")
    e("v_readfirstlane_b32 s3, v4")
    e(f"v_and_b32 v{vN}, 15, v{vLANE}")
    e(f"v_lshrrev_b32 v{vGq}, 4, v{vLANE}")
    e("s_and_b32 s73, s5, 1")
    e("s_lshr_b32 s74, s5, 1")
    e(f"v_lshrrev_b32 v4, 3, v{vLANE}")
    e(f"v_and_b32 v5, 7, v{vLANE}")
    e(f"v_lshrrev_b32 v6, 4, v{vLANE}")
    e("v_lshlrev_b32 v6, 1, v6")
    e("v_xor_b32 v5, v5, v6")
    e("v_lshlrev_b32 v5, 4, v5")
    e("s_cmp_eq_u32 s3, 4")
    e("s_cbranch_scc1 L_helper")

    e("s_movk_i32 s66, 896")
    e(f"v_mad_u32_u24 v{vW+1}, v4, s66, v5")
    e(f"v_lshrrev_b32 v4, 5, v{vLANE}")
    e(f"v_and_b32 v5, 31, v{vLANE}")
    for i in range(4):
        e(f"v_add_u32 v6, {2*i}, v4")
        e("v_lshlrev_b32 v6, 1, v6")
        e("v_xor_b32 v6, v6, v5")
        e("v_lshlrev_b32 v6, 4, v6")
        e(f"v_lshl_add_u32 v{vDMA+i}, v4, 9, v6")
    e(f"v_mov_b32 v{vW}, {XM + 12}")
    e(f"s_lshl_b32 {sRING}, {sWAVE}, 15")
    e("s_lshl_b32 s66, s2, 2")
    e(f"s_add_u32 s66, s66, {sWAVE}")
    e(f"s_mul_i32 s66, s66, {stag}")
    e("s_and_b32 s66, s66, 31")
    e(f"s_lshl_b32 {sROT}, s66, 12")
    e(f"s_lshl_b32 s66, {sB}, 3")
    e(f"s_add_u32 s66, s66, {sH}")
    e("s_lshl_b32 s66, s66, 22")
    e(f"s_lshl_b32 s67, {sS}, 19")
    e("s_add_u32 s66, s66, s67")
    e(f"s_lshl_b32 s67, {sWAVE}, 17")
    e("s_add_u32 s66, s66, s67")
    e(f"s_lshl_b32 s68, {sH}, 1")
    e(f"s_add_u32 s68, s68, {sHH}")
    e("s_lshl_b32 s68, s68, 8")
    e(f"s_lshl_b32 s69, {sWAVE}, 6")
    e("s_add_u32 s68, s68, s69")
    e("s_mul_i32 s68, s68, 896")
    e(f"s_lshl_b32 s69, {sC7}, 7")
    e("s_add_u32 s68, s68, s69")
    e(f"s_cmp_lt_u32 {sJ}, 14")
    e("s_cselect_b32 s68, s68, 0x40000000")
    e("s_waitcnt lgkmcnt(0)")
    stamp(1)
    e("s_add_u32 s28, s8, s66")
    e("s_addc_u32 s29, s9, 0")
    e("s_mov_b32 s30, 0x20000")
    e("s_mov_b32 s31, 0x00020000")
    e("s_mov_b32 s40, s14")
    e("s_mov_b32 s41, s15")
    e("s_mov_b32 s42, 3670016")
    e("s_mov_b32 s43, 0x00020000")
    e("s_add_u32 s32, s10, s66")
    e("s_addc_u32 s33, s11, 0")
    e("s_mov_b32 s34, 0x20000")
    e("s_mov_b32 s35, 0x00020000")
    if b0:
        e("s_barrier")

    order = [3, 4, 5, 0, 1, 2] + list(range(6, 16))
    ulist = [("W", 0, 0), ("W", 0, 1)]
    for t in range(16):
        ulist += [("K", t, 0), ("K", t, 1)]
    for t in order:
        ulist += [("V", t, 0), ("V", t, 1)]
    ilist = [(k, t, u, i) for (k, t, u) in ulist for i in range(4)]
    st = dict(next=0, inflight=[], free=[0, 1, 2], slot={}, landed=set())

    def emit_issue(item):
        kind, tile, u, i = item
        if kind == "W":
            ii = u * 4 + i
            e(f"s_add_u32 m0, {sRING}, {24576 + ii*1024}")
            e(f"s_add_u32 s70, s68, {ii*8*896}")
            e.vm(f"buffer_load_dwordx4 v{vW+1}, {SWO}, s70 offen{NT} lds", item)
            return
        tslot = st["slot"][(kind, tile)]
        srd = SK if kind == "K" else SV
        off = (2 * tile + u) * 4096
        so = "s75x" if off else sROT
        so = "s61" if off else sROT
        if i == 0:
            e(f"s_add_u32 m0, {sRING}, {tslot*8192 + u*4096}")
            if off:
                e(f"s_add_u32 s61, {sROT}, {off}")
                e("s_and_b32 s61, s61, 0x1ffff")
            else:
                e("s_nop 0")
        e.vm(f"buffer_load_dwordx4 v{vDMA+i}, {srd}, {so} offen offset:{i*1024}{NT} lds", item)

    def try_issue():
        while st["next"] < len(ilist):
            item = ilist[st["next"]]
            kind, tile, u, i = item
            lim = ni_deep if (kind == "V" and order.index(tile) >= deep_from) else ni
            if len(st["inflight"]) + quantum > lim:
                return
            if kind != "W" and u == 0 and i == 0:
                if not st["free"]:
                    return
                st["slot"][(kind, tile)] = st["free"].pop(0)
            for q_ in range(quantum):
                item = ilist[st["next"]]
                emit_issue(item)
                st["inflight"].append(item)
                st["next"] += 1

    def land(*units):
        for un in units:
            last = un + (3,)
            while last not in st["landed"]:
                if not st["inflight"]:
                    try_issue()
                    assert st["inflight"], ("stuck", un)
                grp = st["inflight"][:quantum]
                e.wait_tag(grp[-1])
                for g_ in grp:
                    st["landed"].add(g_)
                st["inflight"] = st["inflight"][quantum:]
                try_issue()

    def release(kind, tile):
        st["free"].append(st["slot"][(kind, tile)])
        try_issue()

    try_issue()
    stamp(2)
    e(f"v_and_b32 v4, 7, v{vN}")
    e("v_lshlrev_b32 v4, 1, v4")
    e(f"v_lshlrev_b32 v5, 9, v{vN}")
    e(f"v_add_u32 v5, {sRING}, v5")
    for tt in range(4):
        e(f"v_add_u32 v6, {4*tt}, v{vGq}")
        e("v_xor_b32 v6, v6, v4")
        e(f"v_lshl_add_u32 v{vKA+tt}, v6, 4, v5")
    e(f"v_lshrrev_b32 v4, 2, v{vLANE}")
    e(f"v_and_b32 v5, 3, v{vLANE}")
    e("v_lshlrev_b32 v5, 3, v5")
    e(f"v_lshl_add_u32 v5, v4, 9, v5")
    e(f"v_add_u32 v5, {sRING}, v5")
    e("v_and_b32 v4, 7, v4")
    for d in range(8):
        e(f"v_xor_b32 v6, {d}, v4")
        e(f"v_lshl_add_u32 v{vVA+d}, v6, 5, v5")
    e("s_mov_b32 s44, s22")
    e("s_mov_b32 s45, s23")
    e(f"s_mov_b32 s46, {WS_SIZE}")
    e("s_mov_b32 s47, 0x00020000")
    e(f"s_mov_b32 {sC}, {f2u(1.4426950408889634/16.0)}")
    e(f"v_mov_b32 v{vM}, 0xff800000")
    e(f"v_mov_b32 v{vL}, 0")

    def kread(dst, tslot):
        for t in range(8):
            e(f"ds_read_b128 {vr(dst+4*t,4)}, v{vKA+(t&3)} offset:{tslot*8192 + (t>>2)*256}")

    for tile, R in ((0, vR0), (1, vR1), (2, vR2)):
        land(("K", tile, 0), ("K", tile, 1))
        kread(R, st["slot"][("K", tile)])
        e("s_waitcnt lgkmcnt(0)")
        release("K", tile)
    land(("W", 0, 0), ("W", 0, 1), ("K", 5, 0), ("K", 5, 1)) if deep_pre else land(("W", 0, 0), ("W", 0, 1))
    stamp(3)
    e("s_barrier")
    stamp(4)
    e(f"v_and_b32 v4, 1, v{vN}")
    e("v_lshlrev_b32 v4, 9, v4")
    e(f"v_lshl_add_u32 v4, v{vGq}, 4, v4")
    e(f"v_add_u32 v4, {QS}, v4")
    for t in range(8):
        e(f"ds_read_b128 {vr(vQ+4*t,4)}, v4 offset:{t*64}")

    def runmax(p):
        e(f"v_max3_f32 v{vM}, v{vM}, v{vS+4*p}, v{vS+4*p+1}")
        e(f"v_max3_f32 v{vM}, v{vM}, v{vS+4*p+2}, v{vS+4*p+3}")

    def kmfma(p, src, counted):
        for t in range(8):
            if counted:
                e(f"s_waitcnt lgkmcnt({7-t})")
            cc = "0" if t == 0 else vr(vS + 4 * p, 4)
            e(f"v_mfma_f32_16x16x32_bf16 {vr(vS+4*p,4)}, {vr(src+4*t,4)}, {vr(vQ+4*t,4)}, {cc}")

    for p, tile in enumerate(order):
        if tile in (0, 1, 2):
            kmfma(p, {0: vR0, 1: vR1, 2: vR2}[tile], False)
            runmax(p - 1)
        else:
            land(("K", tile, 0), ("K", tile, 1))
            kread(vST, st["slot"][("K", tile)])
            if p > 0:
                runmax(p - 1)
            kmfma(p, vST, True)
            release("K", tile)
        if p == 2:
            e(f"v_bfe_u32 v5, v{vLANE}, 2, 2")
            e(f"v_lshl_add_u32 v5, v{vGq}, 3, v5")
            e(f"v_and_b32 v6, 3, v{vLANE}")
            e("v_lshlrev_b32 v6, 3, v6")
            e("v_lshl_add_u32 v6, v5, 7, v6")
            e("v_bfe_u32 v7, v5, 1, 2")
            e(f"v_xor_b32 v8, {sWAVE}, v7")
            e("v_lshl_add_u32 v8, v8, 5, v6")
            e("v_add_u32 v7, 2, v7")
            e("v_and_b32 v7, 3, v7")
            e(f"v_xor_b32 v9, {sWAVE}, v7")
            e("v_lshl_add_u32 v9, v9, 5, v6")
            e("v_add_u32 v9, 512, v9")
            e("v_add_u32 v10, 0x10000, v8")
            e("v_add_u32 v11, 0x10000, v9")
            for t in range(8):
                off = (t >> 1) * RING + 24576 + (t & 1) * 32 * 128
                a0, a1 = (8, 9) if off <= 65535 else (10, 11)
                off &= 0xFFFF
                e(f"ds_read_b64_tr_b16 {vr(vWO+4*t,2)}, v{a0} offset:{off}")
                e(f"ds_read_b64_tr_b16 {vr(vWO+4*t+2,2)}, v{a1} offset:{off}")
            e("s_waitcnt lgkmcnt(0)")
            e("s_barrier")
            st["free"].append(3)
            try_issue()
            stamp(5)
    stamp(6)
    e("s_nop 7")
    e("s_nop 1")
    runmax(15)
    e(f"v_lshlrev_b32 v4, 2, v{vLANE}")
    for m_ in (16, 32):
        e(f"v_xor_b32 v5, {m_*4}, v4")
        e(f"ds_bpermute_b32 v6, v5, v{vM}")
        e("s_waitcnt lgkmcnt(0)")
        e(f"v_max_f32 v{vM}, v{vM}, v6")
    e(f"v_mul_f32 v{vM}, {sC}, v{vM}")
    e(f"v_and_b32 v5, 1, v{vN}")
    e("v_lshlrev_b32 v5, 4, v5")
    e(f"s_lshl_b32 s66, {sWAVE}, 2")
    e(f"s_add_u32 s66, s66, {MX}")
    e("v_add_u32 v6, s66, v5")
    e(f"ds_write_b32 v6, v{vM}")

    def pcalc(p):
        for r_ in range(4):
            e(f"v_fma_f32 v{vS+4*p+r_}, v{vS+4*p+r_}, {sC}, -v{vM}")
        for r_ in range(4):
            e(f"v_exp_f32 v{vS+4*p+r_}, v{vS+4*p+r_}")
        e("s_nop 0")
        e(f"v_cvt_pk_bf16_f32 v{vQ+2*p}, v{vS+4*p}, v{vS+4*p+1}")
        e(f"v_cvt_pk_bf16_f32 v{vQ+2*p+1}, v{vS+4*p+2}, v{vS+4*p+3}")
        e(f"v_add_f32 v4, v{vS+4*p}, v{vS+4*p+1}")
        e(f"v_add_f32 v5, v{vS+4*p+2}, v{vS+4*p+3}")
        e(f"v_add_f32 v{vL}, v{vL}, v4")
        e(f"v_add_f32 v{vL}, v{vL}, v5")

    stamp(7)
    vO = vR0
    for p, tile in enumerate(order):
        land(("V", tile, 0), ("V", tile, 1))
        ts_ = st["slot"][("V", tile)]
        for d in range(16):
            e(f"ds_read_b64_tr_b16 {vr(vST+2*d,2)}, v{vVA+(d&7)} offset:{ts_*8192 + (d>>3)*256}")
        if p < 8:
            pcalc(2 * p)
            pcalc(2 * p + 1)
        else:
            e("s_nop 0")
        for d in range(16):
            if d % 2 == 0:
                e(f"s_waitcnt lgkmcnt({14-d})")
            cc = "0" if p == 0 else vr(vO + 4 * d, 4)
            e(f"v_mfma_f32_16x16x16_bf16 {vr(vO+4*d,4)}, {vr(vST+2*d,2)}, {vr(vQ+2*p,2)}, {cc}")
        release("V", tile)
        if p == 8:
            e(f"v_and_b32 v5, 1, v{vN}")
            e("v_lshlrev_b32 v5, 6, v5")
            e(f"v_lshl_add_u32 v5, v{vGq}, 2, v5")
            e(f"s_lshl_b32 s66, {sWAVE}, 4")
            e(f"s_add_u32 s66, s66, {LX}")
            e("v_add_u32 v5, s66, v5")
            e(f"ds_write_b32 v5, v{vL}")
            e(f"v_lshlrev_b32 v8, 10, v{vN}")
            e(f"v_lshl_add_u32 v8, v{vGq}, 4, v8")
            e(f"s_lshl_b32 s66, {sWAVE}, 11")
            e(f"s_add_u32 s66, s66, {OPART}")
            e("v_add_u32 v8, s66, v8")
            e("v_lshrrev_b32 v9, 7, v0")
            e("v_and_b32 v10, 127, v0")
            e("v_lshlrev_b32 v11, 10, v9")
            e("v_lshl_add_u32 v11, v10, 3, v11")
            e(f"v_add_u32 v11, {OPART}, v11")
            e("v_lshlrev_b32 v28, 4, v9")
            e(f"v_add_u32 v28, {MX}, v28")
            e("v_lshlrev_b32 v29, 6, v9")
            e(f"v_add_u32 v29, {LX}, v29")
            e(f"s_lshl_b32 s68, {sG}, 1")
            e(f"s_add_u32 s68, s68, {sB}")
            e("s_lshl_b32 s68, s68, 3")
            e(f"s_add_u32 s68, s68, {sS}")
            e("s_lshl_b32 s68, s68, 12")
            e(f"s_add_u32 s69, s68, {WS_OA}")
            e(f"s_add_u32 s68, s68, {WS_OB}")
            e("v_lshlrev_b32 v7, 4, v0")
            e(f"v_cmp_gt_u32 s[62:63], 2, v{vN}")
            e(f"v_mov_b32 v6, {XM}")
            e("ds_read_b32 v6, v6")
            e("s_waitcnt lgkmcnt(0)")
            e(f"v_readfirstlane_b32 {sXM}, v6")
    stamp(8)
    e("s_mov_b64 s[66:67], exec")
    e("s_mov_b64 exec, s[62:63]")
    e("s_nop 5")
    for d in range(16):
        e(f"ds_write_b128 v8, {vr(vO+4*d,4)} offset:{d*64}")
    e("s_mov_b64 exec, s[66:67]")
    e("s_waitcnt lgkmcnt(0)")
    e("s_barrier")
    for w in range(4):
        e(f"ds_read_b64 {vr(vST+2*w,2)}, v11 offset:{w*2048}")
    e(f"ds_read_b128 {vr(vST+8,4)}, v28")
    for w in range(4):
        e(f"ds_read_b128 {vr(vST+12+4*w,4)}, v29 offset:{w*16}")
    e("v_mov_b32 v16, 0xfffffffe")
    e("s_waitcnt lgkmcnt(4)")
    m0 = vST + 8
    e(f"v_max3_f32 v14, v{m0}, v{m0+1}, v{m0+2}")
    e(f"v_max_f32 v14, v14, v{m0+3}")
    for w in range(4):
        e(f"v_sub_f32 v{m0+w}, v{m0+w}, v14")
    for w in range(4):
        e(f"v_exp_f32 v{m0+w}, v{m0+w}")
    e("s_waitcnt lgkmcnt(0)")
    e(f"v_mul_f32 v12, v{m0}, v{vST}")
    e(f"v_mul_f32 v13, v{m0}, v{vST+1}")
    for w in range(1, 4):
        e(f"v_fmac_f32 v12, v{m0+w}, v{vST+2*w}")
        e(f"v_fmac_f32 v13, v{m0+w}, v{vST+2*w+1}")
    for w in range(4):
        l0 = vST + 12 + 4 * w
        e(f"v_add_f32 v{l0}, v{l0}, v{l0+1}")
        e(f"v_add_f32 v{l0+2}, v{l0+2}, v{l0+3}")
        e(f"v_add_f32 v{l0}, v{l0}, v{l0+2}")
    e(f"v_mul_f32 v15, v{m0}, v{vST+12}")
    for w in range(1, 4):
        e(f"v_fmac_f32 v15, v{m0+w}, v{vST+12+4*w}")
    for r_ in (12, 13, 14, 15):
        e(f"v_min_u32 v{r_}, v{r_}, v16")
    e(f"buffer_store_dwordx4 v[12:15], v7, {SWS}, s69 offen")
    stamp(9)
    e("s_mov_b32 s61, s68")
    e("s_mov_b32 s60, 0")
    e(f"s_cmp_ge_u32 {sJ}, 14")
    e("s_cbranch_scc0 L_h1")
    e(f"buffer_store_dwordx4 v[12:15], v7, {SWS}, s68 offen sc1")
    e("s_branch L_final")
    e.label("L_h1")
    e("v_lshlrev_b32 v4, 15, v9")
    e("v_lshl_add_u32 v4, v10, 4, v4")
    e(f"s_lshl_b32 s66, {sHH}, 11")
    e(f"s_lshl_b32 s67, {sG}, 16")
    e("s_add_u32 s66, s66, s67")
    e(f"s_add_u32 s68, s66, {WS_OA}")
    e(f"s_add_u32 s69, s66, {WS_OB}")
    e(f"s_lshr_b32 s67, {sWAVE}, 1")
    e("s_lshl_b32 s67, s67, 3")
    e(f"s_lshr_b32 {sXM}, {sXM}, s67")
    if not apath or mapping != 0:
        e(f"s_mov_b32 {sXM}, 0")
    e(f"s_mov_b32 {sMISS}, 0xff")
    e(f"s_mov_b32 {sSPIN}, 0")
    e.label("L_h1poll")
    for s_ in range(8):
        e(f"s_bitcmp1_b32 {sMISS}, {s_}")
        e(f"s_cbranch_scc0 L_h1skip{s_}")
        e(f"s_bitcmp1_b32 {sXM}, {s_}")
        e(f"s_cselect_b32 s67, s68, s69")
        if s_:
            e(f"s_add_u32 s67, s67, {s_*4096}")
        e(f"buffer_load_dwordx4 {vr(vS+4*s_,4)}, v4, {SWS}, s67 offen sc1")
        e.label(f"L_h1skip{s_}")
    e("s_cmp_lg_u32 s60, 0")
    e("s_cbranch_scc1 L_h1w0")
    e("s_mov_b32 s60, 1")
    e(f"buffer_store_dwordx4 v[12:15], v7, {SWS}, s61 offen sc1")
    e("s_waitcnt vmcnt(1)")
    e("s_branch L_h1w1")
    e.label("L_h1w0")
    e("s_waitcnt vmcnt(0)")
    e.label("L_h1w1")
    for s_ in range(8):
        e(f"s_bitcmp1_b32 {sMISS}, {s_}")
        e(f"s_cbranch_scc0 L_h1chk{s_}")
        e(f"v_max3_u32 v7, v{vS+4*s_}, v{vS+4*s_+1}, v{vS+4*s_+2}")
        e(f"v_max_u32 v7, v7, v{vS+4*s_+3}")
        e("v_cmp_eq_u32 vcc, -1, v7")
        e(f"s_cmp_eq_u64 vcc, 0")
        e(f"s_cbranch_scc0 L_h1chk{s_}")
        e(f"s_bitset0_b32 {sMISS}, {s_}")
        e.label(f"L_h1chk{s_}")
    e(f"s_cmp_eq_u32 {sMISS}, 0")
    e("s_cbranch_scc1 L_h1done")
    e(f"s_add_u32 {sSPIN}, {sSPIN}, 1")
    e(f"s_cmp_lt_u32 {sSPIN}, 64")
    e(f"s_cselect_b32 {sXM}, {sXM}, 0")
    e(f"s_cmp_lt_u32 {sSPIN}, {SPIN_CAP}")
    e("s_cbranch_scc1 L_h1poll")
    e.label("L_h1done")
    stamp(10)
    e(f"v_max3_f32 v7, v{vS+2}, v{vS+6}, v{vS+10}")
    e(f"v_max3_f32 v7, v7, v{vS+14}, v{vS+18}")
    e(f"v_max3_f32 v7, v7, v{vS+22}, v{vS+26}")
    e(f"v_max_f32 v7, v7, v{vS+30}")
    for s_ in range(8):
        e(f"v_sub_f32 v{vS+4*s_+2}, v{vS+4*s_+2}, v7")
    for s_ in range(8):
        e(f"v_exp_f32 v{vS+4*s_+2}, v{vS+4*s_+2}")
    e("s_nop 0")
    e(f"v_mul_f32 v8, v{vS+2}, v{vS}")
    e(f"v_mul_f32 v11, v{vS+2}, v{vS+1}")
    e(f"v_mul_f32 v12, v{vS+2}, v{vS+3}")
    for s_ in range(1, 8):
        e(f"v_fmac_f32 v8, v{vS+4*s_+2}, v{vS+4*s_}")
        e(f"v_fmac_f32 v11, v{vS+4*s_+2}, v{vS+4*s_+1}")
        e(f"v_fmac_f32 v12, v{vS+4*s_+2}, v{vS+4*s_+3}")
    e("v_rcp_f32 v12, v12")
    e("v_lshlrev_b32 v13, 9, v9")
    e("v_lshl_add_u32 v13, v10, 2, v13")
    e("v_mul_f32 v8, v8, v12")
    e("v_mul_f32 v11, v11, v12")
    e(f"v_add_u32 v13, {OSB}, v13")
    e("v_cvt_pk_bf16_f32 v8, v8, v11")
    e("ds_write_b32 v13, v8")
    e(f"v_and_b32 v4, 1, v{vN}")
    e("v_lshlrev_b32 v4, 9, v4")
    e(f"v_lshl_add_u32 v4, v{vGq}, 4, v4")
    e(f"v_add_u32 v4, {OSB}, v4")
    e(f"v_lshlrev_b32 v5, 8, v{vN}")
    e(f"v_lshl_add_u32 v5, v{vGq}, 4, v5")
    e(f"s_lshl_b32 s66, {sG}, 1")
    e(f"s_add_u32 s66, s66, {sHH}")
    e("s_lshl_b32 s66, s66, 9")
    e(f"s_lshl_b32 s67, {sC7}, 14")
    e("s_add_u32 s66, s66, s67")
    e(f"s_lshl_b32 s67, {sWAVE}, 6")
    e("s_add_u32 s66, s66, s67")
    e(f"s_add_u32 s66, s66, {WS_YS}")
    e("s_waitcnt lgkmcnt(0)")
    e("s_barrier")
    for t in range(8):
        e(f"ds_read_b128 {vr(vST+4*t,4)}, v4 offset:{t*64}")
    for t in range(8):
        e(f"s_waitcnt lgkmcnt({7-t})")
        cc = "0" if t == 0 else vr(vS, 4)
        e(f"v_mfma_f32_16x16x32_bf16 {vr(vS,4)}, {vr(vWO+4*t,4)}, {vr(vST+4*t,4)}, {cc}")
    e("s_mov_b64 exec, s[62:63]")
    e("s_nop 7")
    for r_ in range(4):
        e(f"v_min_u32 v{vS+r_}, v{vS+r_}, v16")
    e(f"buffer_store_dwordx4 {vr(vS,4)}, v5, {SWS}, s66 offen sc1")
    stamp(11)
    if ts:
        e("s_mov_b64 exec, -1")
        e("s_branch L_ts")
    e("s_endpgm")

    e.label("L_final")
    e(f"s_lshl_b32 s66, {sG}, 1")
    e(f"s_add_u32 s66, s66, {sJ}")
    e("s_sub_u32 s66, s66, 14")
    e("s_cmp_ge_u32 s66, 14")
    e("s_cbranch_scc1 L_fin_exit")
    e("s_lshr_b32 s74, s66, 1")
    e("s_and_b32 s73, s66, 1")
    e("s_mul_i32 s66, s73, 896")
    e("s_add_u32 s52, s24, s66")
    e("s_addc_u32 s53, s25, 0")
    e("s_movk_i32 s54, 896")
    e("s_mov_b32 s55, 0x00020000")
    e("s_mov_b32 s60, s16")
    e("s_mov_b32 s61, s17")
    e("s_movk_i32 s62, 896")
    e("s_mov_b32 s63, 0x00020000")
    e("s_mov_b32 s56, s18")
    e("s_mov_b32 s57, s19")
    e("s_movk_i32 s58, 1792")
    e("s_mov_b32 s59, 0x00020000")
    e(f"v_lshlrev_b32 v4, 4, v{vLANE}")
    e(f"buffer_load_dwordx4 {vr(vST,4)}, v4, {SGW}, 0 offen")
    e(f"buffer_load_dwordx4 {vr(vST+4,4)}, v4, {SX}, 0 offen")
    e(f"v_mov_b32 v6, {XM}")
    e("ds_read2_b32 v[14:15], v6 offset0:1 offset1:2")
    e(f"v_lshlrev_b32 v5, 5, v{vLANE}")
    e("s_waitcnt vmcnt(0) lgkmcnt(0)")
    e("v_mov_b32 v7, 0")
    for k in range(4):
        e(f"v_lshlrev_b32 v8, 16, v{vST+k}")
        e(f"v_lshlrev_b32 v9, 16, v{vST+4+k}")
        e(f"v_and_b32 v10, 0xffff0000, v{vST+k}")
        e(f"v_and_b32 v11, 0xffff0000, v{vST+4+k}")
        e("v_mul_f32 v8, v8, v9")
        e("v_mul_f32 v10, v10, v11")
        e("v_cvt_pk_bf16_f32 v8, v8, v10")
        e("v_lshlrev_b32 v9, 16, v8")
        e("v_and_b32 v8, 0xffff0000, v8")
        e("v_add_f32 v7, v7, v9")
        e("v_add_f32 v7, v7, v8")
    e(f"v_lshlrev_b32 v8, 2, v{vLANE}")
    for m_ in (1, 2, 4, 8, 16, 32):
        e(f"v_xor_b32 v9, {m_*4}, v8")
        e("ds_bpermute_b32 v10, v9, v7")
        e("s_waitcnt lgkmcnt(0)")
        e("v_add_f32 v7, v7, v10")
    e("v_cvt_pk_bf16_f32 v7, v7, v7")
    e("v_lshlrev_b32 v7, 16, v7")
    e(f"v_mul_f32 v8, {f2u(-1.4426950408889634)}, v7")
    e("v_exp_f32 v8, v8")
    e("s_nop 0")
    e("v_add_f32 v8, 1.0, v8")
    e("v_rcp_f32 v8, v8")
    e("s_nop 0")
    e("v_cvt_pk_bf16_f32 v8, v8, v8")
    e("v_lshlrev_b32 v30, 16, v8")
    e("v_sub_f32 v9, 1.0, v30")
    e("v_cvt_pk_bf16_f32 v9, v9, v9")
    e("v_lshlrev_b32 v31, 16, v9")
    e(f"s_mov_b32 {sSPIN}, 0")
    e.label("L_fflag")
    e(f"buffer_load_dwordx4 {vr(vST,4)}, v5, {SWS}, 0 offen offset:{WS_XT} sc1" if WS_XT < 4096 else f"s_movk_i32 s66, {WS_XT}")
    e(f"buffer_load_dwordx4 {vr(vST,4)}, v5, {SWS}, s66 offen sc1")
    e(f"buffer_load_dwordx4 {vr(vST+4,4)}, v5, {SWS}, s66 offen offset:16 sc1")
    e("s_waitcnt vmcnt(0)")
    e(f"v_xor_b32 v6, v{vST+1}, v14")
    e(f"v_xor_b32 v7, v{vST+3}, v14")
    e(f"v_xor_b32 v8, v{vST+5}, v14")
    e(f"v_xor_b32 v9, v{vST+7}, v14")
    e("v_or_b32 v6, v6, v7")
    e("v_or3_b32 v6, v6, v8, v9")
    e("v_cmp_ne_u32 vcc, 0, v6")
    e("s_cmp_eq_u64 vcc, 0")
    e("s_cbranch_scc1 L_fflag_ok")
    e(f"s_add_u32 {sSPIN}, {sSPIN}, 1")
    e(f"s_cmp_lt_u32 {sSPIN}, {SPIN_CAP}")
    e("s_cbranch_scc1 L_fflag")
    e.label("L_fflag_ok")
    e(f"v_lshlrev_b32 v4, 9, v{vGq}")
    e(f"v_lshl_add_u32 v4, v{vN}, 2, v4")
    e("s_lshl_b32 s66, s74, 14")
    e("s_lshl_b32 s67, s73, 8")
    e("s_add_u32 s66, s66, s67")
    e(f"s_lshl_b32 s67, {sWAVE}, 6")
    e("s_add_u32 s66, s66, s67")
    e(f"s_add_u32 s66, s66, {WS_YS}")
    e("s_mul_i32 s68, s73, 896")
    e("s_lshl_b32 s67, s74, 7")
    e("s_add_u32 s68, s68, s67")
    e(f"s_lshl_b32 s67, {sWAVE}, 5")
    e("s_add_u32 s68, s68, s67")
    e(f"v_lshlrev_b32 v5, 1, v{vN}")
    e(f"v_lshlrev_b32 v9, 2, v{vLANE}")
    e("v_xor_b32 v10, 64, v9")
    e("v_xor_b32 v12, 128, v9")
    e(f"v_cmp_gt_u32 s[62:63], 16, v{vLANE}")
    e(f"s_mov_b32 {sMISS}, 0xff")
    e(f"s_mov_b32 {sSPIN}, 0")
    e.label("L_h2poll")
    for i in range(8):
        e(f"s_bitcmp1_b32 {sMISS}, {i}")
        e(f"s_cbranch_scc0 L_h2skip{i}")
        e(f"s_add_u32 s67, s66, {i*2048}")
        e(f"buffer_load_dword v{vS+i}, v4, {SWS}, s67 offen sc1")
        e.label(f"L_h2skip{i}")
    e("s_waitcnt vmcnt(0)")
    for i in range(8):
        e(f"s_bitcmp1_b32 {sMISS}, {i}")
        e(f"s_cbranch_scc0 L_h2chk{i}")
        e(f"v_cmp_eq_u32 vcc, -1, v{vS+i}")
        e(f"s_cmp_eq_u64 vcc, 0")
        e(f"s_cbranch_scc0 L_h2chk{i}")
        e(f"s_bitset0_b32 {sMISS}, {i}")
        e.label(f"L_h2chk{i}")
    e(f"s_cmp_eq_u32 {sMISS}, 0")
    e("s_cbranch_scc1 L_h2done")
    e(f"s_add_u32 {sSPIN}, {sSPIN}, 1")
    e(f"s_cmp_lt_u32 {sSPIN}, {SPIN_CAP}")
    e("s_cbranch_scc1 L_h2poll")
    e.label("L_h2done")
    stamp(10)
    e(f"v_add_f32 v8, v{vS}, v{vS+1}")
    e(f"v_add_f32 v7, v{vS+2}, v{vS+3}")
    e(f"v_add_f32 v13, v{vS+4}, v{vS+5}")
    e(f"v_add_f32 v11, v{vS+6}, v{vS+7}")
    e("v_add_f32 v8, v8, v7")
    e("v_add_f32 v13, v13, v11")
    e("v_mul_f32 v8, v8, v30")
    e("v_fmac_f32 v8, v13, v31")
    e("ds_bpermute_b32 v11, v10, v8")
    e("s_waitcnt lgkmcnt(0)")
    e("v_add_f32 v8, v8, v11")
    e("ds_bpermute_b32 v11, v12, v8")
    e("s_waitcnt lgkmcnt(0)")
    e("v_add_f32 v8, v8, v11")
    e("v_cvt_pk_bf16_f32 v8, v8, v8")
    e("s_mov_b64 exec, s[62:63]")
    e(f"buffer_store_short v8, v5, {SOUT}, s68 offen")
    e("s_or_b32 s66, s73, s74")
    e(f"s_or_b32 s66, s66, {sWAVE}")
    e("s_cmp_lg_u32 s66, 0")
    e("s_cbranch_scc1 L_nobump")
    e("v_add_u32 v15, 1, v15")
    e("v_mov_b32 v5, 0")
    e(f"buffer_store_dword v15, v5, {SWS}, 0 offen")
    e.label("L_nobump")
    stamp(11)
    if ts:
        e("s_mov_b64 exec, -1")
        e("s_branch L_ts")
    e.label("L_fin_exit")
    if ts:
        e("s_branch L_ts")
    e("s_endpgm")

    e.label("L_helper")
    e.q = []
    e("s_setprio 3")
    e(f"v_lshrrev_b32 v4, 2, v{vLANE}")
    e(f"v_and_b32 v5, 3, v{vLANE}")
    e(f"v_lshrrev_b32 v6, 5, v{vLANE}")
    e("v_lshlrev_b32 v6, 1, v6")
    e("v_xor_b32 v5, v5, v6")
    e("v_lshlrev_b32 v5, 4, v5")
    e(f"v_lshl_add_u32 v{vW}, v4, 13, v5")
    e(f"s_lshl_b32 s67, {sH}, 10")
    e(f"s_lshl_b32 s68, {sJ}, 6")
    e("s_add_u32 s67, s67, s68")
    e(f"v_and_b32 v4, 1, v{vN}")
    e("s_movk_i32 s66, 896")
    e("v_mul_lo_u32 v4, v4, s66")
    e(f"v_lshl_add_u32 v4, v{vGq}, 4, v4")
    e("v_mov_b32 v7, 0")
    e(f"v_mov_b32 v8, {XM}")
    e("v_mov_b32 v9, 0")
    e("ds_write_b32 v8, v9 offset:12")
    e(f"v_lshlrev_b32 v5, 4, v{vLANE}")
    e(f"s_lshl_b32 s68, {sG}, 1")
    e(f"s_add_u32 s68, s68, {sB}")
    e("s_lshl_b32 s68, s68, 3")
    e(f"s_add_u32 s68, s68, {sS}")
    e("s_lshl_b32 s68, s68, 12")
    e(f"s_add_u32 s70, s68, {WS_OA}")
    e(f"s_add_u32 s68, s68, {WS_OB}")
    e(f"s_lshl_b32 s69, {sG}, 1")
    e(f"s_add_u32 s69, s69, {sHH}")
    e("s_lshl_b32 s69, s69, 9")
    e(f"s_lshl_b32 s71, {sC7}, 14")
    e("s_add_u32 s69, s69, s71")
    e(f"s_add_u32 s69, s69, {WS_YS}")
    e(f"s_cmp_lt_u32 {sJ}, 14")
    e("s_cselect_b32 s69, s69, 0x40000000")
    e("v_mov_b32 v8, -1")
    e("v_mov_b32 v9, -1")
    e("v_mov_b32 v10, -1")
    e("v_mov_b32 v11, -1")
    e(f"v_cmp_gt_u32 s[62:63], 32, v{vLANE}")
    e("s_waitcnt lgkmcnt(0)")
    stamp(1)
    e("s_mov_b32 s36, s12")
    e("s_mov_b32 s37, s13")
    e("s_mov_b32 s38, 3670016")
    e("s_mov_b32 s39, 0x00020000")
    e(f"s_mov_b32 m0, {AUX}")
    e("s_mov_b32 s44, s22")
    e("s_mov_b32 s45, s23")
    e(f"s_mov_b32 s46, {WS_SIZE}")
    e("s_mov_b32 s47, 0x00020000")
    for i in range(28):
        e.vm(f"buffer_load_dwordx4 v{vW}, {SWQ}, s67 offen{NT} lds", "WQ")
        if i < 27:
            e("s_add_u32 m0, m0, 1024")
            e(f"s_add_u32 s67, s67, {16*8192}")
    if b0:
        e("s_barrier")
    e.vm(f"buffer_load_dword v26, v7, {SWS}, 0 offen", "EP")
    e("s_mov_b32 s52, s24")
    e("s_mov_b32 s53, s25")
    e("s_movk_i32 s54, 1792")
    e("s_mov_b32 s55, 0x00020000")
    XF = 128
    for t in range(14):
        e.vm(f"buffer_load_dwordx4 {vr(XF+4*t,4)}, v4, {SX}, 0 offen offset:{t*64}", "X")
    for q in range(4):
        e.vm(f"buffer_store_dwordx4 v[8:11], v5, {SWS}, s68 offen offset:{q*1024} sc1", "CL")
    for q in range(4):
        e.vm(f"buffer_store_dwordx4 v[8:11], v5, {SWS}, s70 offen offset:{q*1024} sc1", "CL")
    e("s_mov_b64 exec, s[62:63]")
    e.vm(f"buffer_store_dwordx4 v[8:11], v5, {SWS}, s69 offen sc1", "CL")
    e("s_mov_b64 exec, -1")
    stamp(2)
    e(f"v_bfe_u32 v12, v{vLANE}, 2, 2")
    e(f"v_lshl_add_u32 v12, v{vGq}, 3, v12")
    e(f"v_and_b32 v13, 3, v{vLANE}")
    e("v_lshlrev_b32 v13, 3, v13")
    e("v_lshl_add_u32 v13, v12, 6, v13")
    e(f"v_add_u32 v13, {AUX}, v13")
    e(f"v_and_b32 v14, 1, v{vGq}")
    for ct in range(2):
        e(f"v_xor_b32 v6, {ct}, v14")
        e(f"v_lshl_add_u32 v{16+ct}, v6, 5, v13")
    e(f"v_and_b32 v6, 1, v{vN}")
    e("v_lshlrev_b32 v6, 11, v6")
    e(f"v_lshrrev_b32 v7, 1, v{vN}")
    e("v_lshl_add_u32 v6, v7, 6, v6")
    e(f"v_lshl_add_u32 v6, v{vGq}, 4, v6")
    e("v_cmp_eq_u32 s[56:57], 1, v7")
    e(f"v_cmp_gt_u32 s[58:59], 4, v{vN}")
    e(f"s_lshl_b32 s66, {sG}, 12")
    e(f"s_lshl_b32 s67, {sJ}, 7")
    e("s_add_u32 s66, s66, s67")
    e(f"s_add_u32 s66, s66, {WS_QP}")
    e("s_getreg_b32 s72, hwreg(HW_REG_XCC_ID)")
    e("s_and_b32 s72, s72, 15")
    e(f"v_lshlrev_b32 v24, 4, v{vLANE}")
    e(f"s_lshl_b32 s68, {sG}, 12")
    e(f"s_lshl_b32 s67, {sB}, 11")
    e("s_add_u32 s68, s68, s67")
    e(f"s_add_u32 s68, s68, {WS_QP}")
    e(f"s_lshl_b32 s67, {sG}, 4")
    e(f"s_add_u32 s67, s67, {sJ}")
    e("s_lshl_b32 s67, s67, 3")
    e(f"s_add_u32 s67, s67, {WS_XT}")
    e("v_mov_b32 v28, s72")
    e("v_mov_b32 v7, 0")
    e(f"v_cmp_eq_u32 s[62:63], 0, v{vLANE}")
    e(f"v_lshlrev_b32 v25, 3, v{vLANE}")
    e(f"v_add_u32 v25, 0, v25")
    e.wait_tag("WQ", "X", "EP")
    stamp(3)
    e("s_mov_b32 s69, 0x9E3779B1")
    e("v_mul_lo_u32 v27, v26, s69")
    e("v_add_u32 v27, 0x7F4A7C15, v27")
    e("v_mov_b32 v29, v27")
    WF = 32

    def qreads(t):
        for ct in range(2):
            d = WF + (t & 3) * 8 + ct * 4
            e(f"ds_read_b64_tr_b16 {vr(d,2)}, v{16+ct} offset:{t*2048}")
            e(f"ds_read_b64_tr_b16 {vr(d+2,2)}, v{16+ct} offset:{t*2048+256}")
    for t in range(3):
        qreads(t)
    for t in range(14):
        ahead = min(13, t + 2) - t
        e(f"s_waitcnt lgkmcnt({4*ahead})")
        for ct in range(2):
            d = WF + (t & 3) * 8 + ct * 4
            cc = "0" if t == 0 else vr(184 + 4 * ct, 4)
            e(f"v_mfma_f32_16x16x32_bf16 {vr(184+4*ct,4)}, {vr(d,4)}, {vr(XF+4*t,4)}, {cc}")
        if t + 3 < 14:
            qreads(t + 3)
    e("s_waitcnt vmcnt(0)")
    e.q = []
    e("s_nop 7")
    e("v_cvt_pk_bf16_f32 v32, v184, v185")
    e("v_cvt_pk_bf16_f32 v33, v186, v187")
    e("v_cvt_pk_bf16_f32 v34, v188, v189")
    e("v_cvt_pk_bf16_f32 v35, v190, v191")
    e("v_mov_b32 v45, v27")
    e("v_mov_b32 v47, v27")
    e("v_cndmask_b32 v44, v32, v34, s[56:57]")
    e("v_cndmask_b32 v46, v33, v35, s[56:57]")
    e(f"s_add_u32 s69, s66, {WS_QA - WS_QP}")
    e(f"s_add_u32 s70, s67, {WS_XA - WS_XT}")
    e("s_mov_b64 exec, s[58:59]")
    e(f"buffer_store_dwordx4 v[44:47], v6, {SWS}, s69 offen")
    e("s_mov_b64 exec, s[62:63]")
    e(f"buffer_store_dwordx2 v[28:29], v7, {SWS}, s70 offen")
    e("s_mov_b64 exec, -1")
    stamp(6)
    e(f"s_lshl_b32 s74, {sG}, 7")
    e(f"s_add_u32 s74, s74, {WS_XT}")
    e(f"v_cmp_gt_u32 s[60:61], 16, v{vLANE}")
    e(f"s_mov_b32 {sSPIN}, 0")
    e("s_mov_b32 s73, 0")
    e.label("L_qpoll")
    e(f"s_cmp_lt_u32 {sSPIN}, {qa_rounds}")
    e("s_cbranch_scc1 L_qA")
    e("s_cmp_lg_u32 s73, 0")
    e("s_cbranch_scc1 L_qB0")
    e("s_mov_b32 s73, 1")
    e("s_mov_b64 exec, s[58:59]")
    e(f"buffer_store_dwordx4 v[44:47], v6, {SWS}, s66 offen sc1")
    e("s_mov_b64 exec, s[62:63]")
    e(f"buffer_store_dwordx2 v[28:29], v7, {SWS}, s67 offen sc1")
    e("s_mov_b64 exec, -1")
    e.label("L_qB0")
    e(f"s_and_b32 s69, {sSPIN}, 1")
    e("s_cmp_eq_u32 s69, 0")
    e("s_cbranch_scc1 L_qA")
    e("s_mov_b32 s69, s68")
    e("s_mov_b32 s70, s74")
    e("s_branch L_qL")
    e.label("L_qA")
    e(f"s_add_u32 s69, s68, {WS_QA - WS_QP}")
    e(f"s_add_u32 s70, s74, {WS_XA - WS_XT}")
    e.label("L_qL")
    e(f"buffer_load_dwordx4 v[64:67], v24, {SWS}, s69 offen sc1")
    e(f"buffer_load_dwordx4 v[68:71], v24, {SWS}, s69 offen offset:1024 sc1")
    e("s_mov_b64 exec, s[60:61]")
    e(f"buffer_load_dwordx2 v[30:31], v25, {SWS}, s70 offen sc1")
    e("s_mov_b64 exec, -1")
    e("v_mov_b32 v73, 0")
    e("s_waitcnt vmcnt(0)")
    e("v_xor_b32 v72, v65, v27")
    e("s_mov_b64 exec, s[60:61]")
    e("v_xor_b32 v73, v31, v27")
    e("s_mov_b64 exec, -1")
    e("v_xor_b32 v74, v67, v27")
    e("v_or3_b32 v72, v72, v73, v74")
    e("v_xor_b32 v74, v69, v27")
    e("v_xor_b32 v75, v71, v27")
    e("v_or3_b32 v72, v72, v74, v75")
    if ts:
        for rr in range(3):
            e(f"s_cmp_eq_u32 {sSPIN}, {rr}")
            e(f"s_cbranch_scc0 L_rs{rr}")
            stamp(9 + rr)
            e.label(f"L_rs{rr}")
    e("v_cmp_ne_u32 vcc, 0, v72")
    e("s_cmp_eq_u64 vcc, 0")
    e("s_cbranch_scc1 L_qready")
    e(f"s_add_u32 {sSPIN}, {sSPIN}, 1")
    e(f"s_cmp_lt_u32 {sSPIN}, {SPIN_CAP}")
    e("s_cbranch_scc1 L_qpoll")
    e.label("L_qready")
    stamp(7)
    if ts:
        e(f"s_mov_b32 s84, {sSPIN}")
    e("v_mov_b32 v65, v66")
    e("v_mov_b32 v69, v70")
    e(f"v_lshlrev_b32 v9, 3, v{vLANE}")
    e(f"v_add_u32 v9, {QS}, v9")
    e("ds_write_b64 v9, v[64:65]")
    e("ds_write_b64 v9, v[68:69] offset:512")
    e("s_mov_b64 exec, s[60:61]")
    e("v_cmp_eq_u32 vcc, s72, v30")
    e("s_mov_b64 exec, -1")
    e("s_nop 1")
    e("v_mov_b32 v8, vcc_lo")
    e("v_mov_b32 v9, v27")
    e("v_mov_b32 v10, v26")
    e("v_mov_b32 v11, 1")
    e(f"v_mov_b32 v12, {XM}")
    e("s_waitcnt lgkmcnt(0)")
    e("ds_write_b128 v12, v[8:11]")
    e("s_waitcnt lgkmcnt(0)")
    stamp(8)
    e("s_cmp_lg_u32 s73, 0")
    e("s_cbranch_scc1 L_qBd")
    e("s_mov_b64 exec, s[58:59]")
    e(f"buffer_store_dwordx4 v[44:47], v6, {SWS}, s66 offen sc1")
    e("s_mov_b64 exec, s[62:63]")
    e(f"buffer_store_dwordx2 v[28:29], v7, {SWS}, s67 offen sc1")
    e("s_mov_b64 exec, -1")
    e.label("L_qBd")
    e("s_barrier")
    e("s_barrier")
    if ts:
        e("s_branch L_ts")
    e("s_endpgm")

    if ts:
        e.label("L_ts")
        e("s_waitcnt lgkmcnt(0)")
        e("s_mov_b32 s44, s22")
        e("s_mov_b32 s45, s23")
        e(f"s_mov_b32 s46, {WS_SIZE}")
        e("s_mov_b32 s47, 0x00020000")
        e("s_mul_i32 s66, s2, 5")
        e("s_add_u32 s66, s66, s3")
        e("s_lshl_b32 s66, s66, 6")
        e(f"s_add_u32 s66, s66, {WS_TS}")
        e("v_mov_b32 v4, s66")
        e(f"v_cmp_eq_u32 vcc, 0, v{vLANE}")
        e("s_and_saveexec_b64 s[68:69], vcc")
        for i in range(12):
            e(f"v_mov_b32 v5, s{76+2*i}")
            e(f"buffer_store_dword v5, v4, {SWS}, 0 offen offset:{4*i}")
        e("s_endpgm")
    e.label("L_end")
    e("s_endpgm")
    A('.section .rodata,"a"')
    A(".p2align 6")
    A(f".amdhsa_kernel {NAME}_kernel")
    A(f"  .amdhsa_next_free_vgpr {NVGPR}")
    A("  .amdhsa_next_free_sgpr 102")
    A(f"  .amdhsa_accum_offset {NVGPR}")
    A("  .amdhsa_group_segment_fixed_size 0")
    A("  .amdhsa_kernarg_size 112")
    A("  .amdhsa_user_sgpr_count 2")
    A("  .amdhsa_user_sgpr_kernarg_segment_ptr 1")
    A("  .amdhsa_system_sgpr_workgroup_id_x 1")
    A(".end_amdhsa_kernel")
    return "\n".join(e.o) + "\n"


if __name__ == "__main__":
    out = sys.argv[1] if len(sys.argv) > 1 else "k2.s"
    kw = {}
    for a in sys.argv[2:]:
        if a == "ts":
            kw["ts"] = True
        elif "=" in a:
            k, v = a.split("=")
            kw[k] = int(v)
    open(out, "w").write(gen(**kw))
```

```python
import sys, struct

NAME = "gated_mix__gqa_block_cached__gqa_block_cached__decode"
HDR = open("cdna_kernels/%s.s.ref" % NAME).read().split("; Override launch geometry")[0]

WS_EP = 0x0
WS_XT = 0x1000
WS_QP = 0x40000
WS_QA = 0x60000
WS_XA = 0x2000
WS_OB = 0x80000
WS_OA = 0x180000
WS_YS = 0x280000
WS_TS = 0x2A0000
WS_SIZE = 0x2C0000
RING = 32768
AUX = 131072
QS = AUX + 28672
MX = QS + 1024
XM = MX + 64
LX = MX + 128
OSB = LX + 128
OPART = AUX
LDS_SIZE = 163840
SPIN_CAP = 40000


def f2u(f):
    return struct.unpack("<I", struct.pack("<f", f))[0]


class E:
    def __init__(self):
        self.o = []
        self.q = []

    def __call__(self, s):
        self.o.append("  " + s)

    def label(self, l):
        self.o.append(l + ":")

    def vm(self, s, tag):
        self.o.append("  " + s)
        self.q.append(tag)

    def wait_tag(self, *tags):
        idx = max((i for i, t in enumerate(self.q) if t in tags), default=-1)
        if idx < 0:
            return
        n = len(self.q) - 1 - idx
        self.wait_n(n)

    def wait_n(self, n):
        if n >= len(self.q):
            return
        self.o.append(f"  s_waitcnt vmcnt({min(n, 63)})")
        self.q = self.q[len(self.q) - n:] if n else []


def vr(a, n):
    return f"v[{a}:{a+n-1}]"


def gen(ts=False, stag=5, nt=True, apath=True, ni=10, quantum=2, qa_rounds=4, deep_pre=1, deep_from=99, ni_deep=32, b0=1, mapping=0):
    e = E()
    NT = " nt" if nt else ""
    sWAVE = "s3"
    sG, sJ, sBR, sH, sB, sS = "s4", "s5", "s6", "s7", "s26", "s27"
    SK, SV, SWQ, SWO, SWS, SDBG, SX, SOUT, SGW = ("s[28:31]", "s[32:35]", "s[36:39]", "s[40:43]", "s[44:47]",
                                                  "s[48:51]", "s[52:55]", "s[56:59]", "s[60:63]")
    sRING, sROT = "s64", "s65"
    sMISS, sSPIN, sC = "s70", "s71", "s72"
    sHH, sC7, sXM = "s73", "s74", "s75"
    vLANE, vN, vGq = 1, 2, 3
    vDMA = 12
    vKA = 16
    vVA = 20
    vW = 28
    vM, vL = 30, 31
    vST = 32
    vS = 64
    vQ = 128
    vWO = 160
    vR0, vR1 = 192, 224
    vR2 = vS + 32
    NVGPR = 256

    def stamp(i):
        if ts:
            e(f"s_memrealtime s[{76+2*i}:{77+2*i}]")

    A = e.o.append
    A(HDR.rstrip())
    A("; Override launch geometry by editing the next line (default: block=256,")
    A(f"; @launch grid=(256,1,1) block=(320,1,1) lds={LDS_SIZE}")
    A('.amdgcn_target "amdgcn-amd-amdhsa--gfx950"')
    A(".text")
    A(f".globl {NAME}_kernel")
    A(".p2align 8")
    A(f".type {NAME}_kernel,@function")
    A(f"{NAME}_kernel:")
    e("s_cmp_ge_u32 s2, 256")
    e("s_cbranch_scc1 L_end")
    e("s_and_b32 s66, s2, 7")
    e("s_lshr_b32 s67, s2, 3")
    if mapping == 0:
        e("s_lshr_b32 s6, s66, 2")
    else:
        e("s_lshr_b32 s6, s2, 7")
    e("s_mul_i32 s68, s6, 40")
    e("s_add_u32 s68, s68, 8")
    e("s_load_dwordx8 s[8:15], s[0:1], s68")
    e("s_load_dwordx8 s[16:23], s[0:1], 80")
    e("s_load_dwordx2 s[24:25], s[0:1], 0")
    stamp(0)
    if mapping == 0:
        e("s_and_b32 s69, s67, 1")
        e("s_lshl_b32 s4, s66, 1")
        e("s_add_u32 s4, s4, s69")
        e("s_lshr_b32 s5, s67, 1")
        e("s_and_b32 s7, s4, 7")
        e("s_lshr_b32 s26, s5, 3")
        e("s_and_b32 s27, s5, 7")
    else:
        e("s_lshr_b32 s4, s67, 1")
        e("s_and_b32 s26, s67, 1")
        e("s_lshl_b32 s5, s66, 1")
        e("s_add_u32 s5, s5, s26")
        e("s_and_b32 s7, s4, 7")
        e("s_add_u32 s27, s66, s4")
        e("s_and_b32 s27, s27, 7")
    e(f"v_lshrrev_b32 v4, 6, v0")
    e(f"v_and_b32 v{vLANE}, 63, v0")
    e("v_readfirstlane_b32 s3, v4")
    e(f"v_and_b32 v{vN}, 15, v{vLANE}")
    e(f"v_lshrrev_b32 v{vGq}, 4, v{vLANE}")
    e("s_and_b32 s73, s5, 1")
    e("s_lshr_b32 s74, s5, 1")
    e(f"v_lshrrev_b32 v4, 3, v{vLANE}")
    e(f"v_and_b32 v5, 7, v{vLANE}")
    e(f"v_lshrrev_b32 v6, 4, v{vLANE}")
    e("v_lshlrev_b32 v6, 1, v6")
    e("v_xor_b32 v5, v5, v6")
    e("v_lshlrev_b32 v5, 4, v5")
    e("s_cmp_eq_u32 s3, 4")
    e("s_cbranch_scc1 L_helper")

    e("s_movk_i32 s66, 896")
    e(f"v_mad_u32_u24 v{vW+1}, v4, s66, v5")
    e(f"v_lshrrev_b32 v4, 5, v{vLANE}")
    e(f"v_and_b32 v5, 31, v{vLANE}")
    for i in range(4):
        e(f"v_add_u32 v6, {2*i}, v4")
        e("v_lshlrev_b32 v6, 1, v6")
        e("v_xor_b32 v6, v6, v5")
        e("v_lshlrev_b32 v6, 4, v6")
        e(f"v_lshl_add_u32 v{vDMA+i}, v4, 9, v6")
    e(f"v_lshrrev_b32 v4, 2, v{vLANE}")
    e(f"v_and_b32 v5, 3, v{vLANE}")
    e(f"v_lshrrev_b32 v6, 5, v{vLANE}")
    e("v_lshlrev_b32 v6, 1, v6")
    e("v_xor_b32 v5, v5, v6")
    e("v_lshlrev_b32 v5, 4, v5")
    e(f"v_lshl_add_u32 v{vW}, v4, 13, v5")
    e(f"s_lshl_b32 s56, {sH}, 10")
    e(f"s_lshl_b32 s57, {sJ}, 6")
    e("s_add_u32 s56, s56, s57")
    e(f"s_mul_i32 s57, {sWAVE}, {7*16*8192}")
    e("s_add_u32 s56, s56, s57")
    e(f"s_mul_i32 s57, {sWAVE}, 7168")
    e(f"s_add_u32 s57, s57, {AUX}")
    e(f"s_lshl_b32 {sRING}, {sWAVE}, 15")
    e("s_lshl_b32 s66, s2, 2")
    e(f"s_add_u32 s66, s66, {sWAVE}")
    e(f"s_mul_i32 s66, s66, {stag}")
    e("s_and_b32 s66, s66, 31")
    e(f"s_lshl_b32 {sROT}, s66, 12")
    e(f"s_lshl_b32 s66, {sB}, 3")
    e(f"s_add_u32 s66, s66, {sH}")
    e("s_lshl_b32 s66, s66, 22")
    e(f"s_lshl_b32 s67, {sS}, 19")
    e("s_add_u32 s66, s66, s67")
    e(f"s_lshl_b32 s67, {sWAVE}, 17")
    e("s_add_u32 s66, s66, s67")
    e(f"s_lshl_b32 s68, {sH}, 1")
    e(f"s_add_u32 s68, s68, {sHH}")
    e("s_lshl_b32 s68, s68, 8")
    e(f"s_lshl_b32 s69, {sWAVE}, 6")
    e("s_add_u32 s68, s68, s69")
    e("s_mul_i32 s68, s68, 896")
    e(f"s_lshl_b32 s69, {sC7}, 7")
    e("s_add_u32 s68, s68, s69")
    e(f"s_cmp_lt_u32 {sJ}, 14")
    e("s_cselect_b32 s68, s68, 0x40000000")
    e("s_waitcnt lgkmcnt(0)")
    stamp(1)
    e("s_add_u32 s28, s8, s66")
    e("s_addc_u32 s29, s9, 0")
    e("s_mov_b32 s30, 0x20000")
    e("s_mov_b32 s31, 0x00020000")
    e("s_mov_b32 s40, s14")
    e("s_mov_b32 s41, s15")
    e("s_mov_b32 s42, 3670016")
    e("s_mov_b32 s43, 0x00020000")
    e("s_add_u32 s32, s10, s66")
    e("s_addc_u32 s33, s11, 0")
    e("s_mov_b32 s34, 0x20000")
    e("s_mov_b32 s35, 0x00020000")
    if b0 == 1:
        e("s_barrier")
    if b0 == 2:
        e("s_mov_b32 s36, s12")
        e("s_mov_b32 s37, s13")
        e("s_mov_b32 s38, 3670016")
        e("s_mov_b32 s39, 0x00020000")
        for i in range(7):
            e(f"s_add_u32 m0, s57, {i*1024}" if i else "s_mov_b32 m0, s57")
            e(f"s_add_u32 s58, s56, {i*16*8192}" if i else "s_mov_b32 s58, s56")
            e.vm(f"buffer_load_dwordx4 v{vW}, {SWQ}, s58 offen{NT} lds", "WQ")

    order = [3, 4, 5, 0, 1, 2] + list(range(6, 16))
    ulist = [("W", 0, 0), ("W", 0, 1)]
    for t in range(16):
        ulist += [("K", t, 0), ("K", t, 1)]
    for t in order:
        ulist += [("V", t, 0), ("V", t, 1)]
    ilist = [(k, t, u, i) for (k, t, u) in ulist for i in range(4)]
    st = dict(next=0, inflight=[], free=[0, 1, 2], slot={}, landed=set())

    def emit_issue(item):
        kind, tile, u, i = item
        if kind == "W":
            ii = u * 4 + i
            e(f"s_add_u32 m0, {sRING}, {24576 + ii*1024}")
            e(f"s_add_u32 s70, s68, {ii*8*896}")
            e.vm(f"buffer_load_dwordx4 v{vW+1}, {SWO}, s70 offen{NT} lds", item)
            return
        tslot = st["slot"][(kind, tile)]
        srd = SK if kind == "K" else SV
        off = (2 * tile + u) * 4096
        so = "s75x" if off else sROT
        so = "s61" if off else sROT
        if i == 0:
            e(f"s_add_u32 m0, {sRING}, {tslot*8192 + u*4096}")
            if off:
                e(f"s_add_u32 s61, {sROT}, {off}")
                e("s_and_b32 s61, s61, 0x1ffff")
            else:
                e("s_nop 0")
        e.vm(f"buffer_load_dwordx4 v{vDMA+i}, {srd}, {so} offen offset:{i*1024}{NT} lds", item)

    def try_issue():
        while st["next"] < len(ilist):
            item = ilist[st["next"]]
            kind, tile, u, i = item
            lim = ni_deep if (kind == "V" and order.index(tile) >= deep_from) else ni
            if len(st["inflight"]) + quantum > lim:
                return
            if kind != "W" and u == 0 and i == 0:
                if not st["free"]:
                    return
                st["slot"][(kind, tile)] = st["free"].pop(0)
            for q_ in range(quantum):
                item = ilist[st["next"]]
                emit_issue(item)
                st["inflight"].append(item)
                st["next"] += 1

    def land(*units):
        for un in units:
            last = un + (3,)
            while last not in st["landed"]:
                if not st["inflight"]:
                    try_issue()
                    assert st["inflight"], ("stuck", un)
                grp = st["inflight"][:quantum]
                e.wait_tag(grp[-1])
                for g_ in grp:
                    st["landed"].add(g_)
                st["inflight"] = st["inflight"][quantum:]
                try_issue()

    def release(kind, tile):
        st["free"].append(st["slot"][(kind, tile)])
        try_issue()

    try_issue()
    stamp(2)
    e(f"v_and_b32 v4, 7, v{vN}")
    e("v_lshlrev_b32 v4, 1, v4")
    e(f"v_lshlrev_b32 v5, 9, v{vN}")
    e(f"v_add_u32 v5, {sRING}, v5")
    for tt in range(4):
        e(f"v_add_u32 v6, {4*tt}, v{vGq}")
        e("v_xor_b32 v6, v6, v4")
        e(f"v_lshl_add_u32 v{vKA+tt}, v6, 4, v5")
    e(f"v_lshrrev_b32 v4, 2, v{vLANE}")
    e(f"v_and_b32 v5, 3, v{vLANE}")
    e("v_lshlrev_b32 v5, 3, v5")
    e(f"v_lshl_add_u32 v5, v4, 9, v5")
    e(f"v_add_u32 v5, {sRING}, v5")
    e("v_and_b32 v4, 7, v4")
    for d in range(8):
        e(f"v_xor_b32 v6, {d}, v4")
        e(f"v_lshl_add_u32 v{vVA+d}, v6, 5, v5")
    e("s_mov_b32 s44, s22")
    e("s_mov_b32 s45, s23")
    e(f"s_mov_b32 s46, {WS_SIZE}")
    e("s_mov_b32 s47, 0x00020000")
    e(f"s_mov_b32 {sC}, {f2u(1.4426950408889634/16.0)}")
    e(f"v_mov_b32 v{vM}, 0xff800000")
    e(f"v_mov_b32 v{vL}, 0")

    if b0 == 2:
        e.wait_tag("WQ")
        e("s_barrier")

    def kread(dst, tslot):
        for t in range(8):
            e(f"ds_read_b128 {vr(dst+4*t,4)}, v{vKA+(t&3)} offset:{tslot*8192 + (t>>2)*256}")

    for tile, R in ((0, vR0), (1, vR1), (2, vR2)):
        land(("K", tile, 0), ("K", tile, 1))
        kread(R, st["slot"][("K", tile)])
        e("s_waitcnt lgkmcnt(0)")
        release("K", tile)
    land(("W", 0, 0), ("W", 0, 1), ("K", 5, 0), ("K", 5, 1)) if deep_pre else land(("W", 0, 0), ("W", 0, 1))
    stamp(3)
    e("s_barrier")
    stamp(4)
    e(f"v_and_b32 v4, 1, v{vN}")
    e("v_lshlrev_b32 v4, 9, v4")
    e(f"v_lshl_add_u32 v4, v{vGq}, 4, v4")
    e(f"v_add_u32 v4, {QS}, v4")
    for t in range(8):
        e(f"ds_read_b128 {vr(vQ+4*t,4)}, v4 offset:{t*64}")

    def runmax(p):
        e(f"v_max3_f32 v{vM}, v{vM}, v{vS+4*p}, v{vS+4*p+1}")
        e(f"v_max3_f32 v{vM}, v{vM}, v{vS+4*p+2}, v{vS+4*p+3}")

    def kmfma(p, src, counted):
        for t in range(8):
            if counted:
                e(f"s_waitcnt lgkmcnt({7-t})")
            cc = "0" if t == 0 else vr(vS + 4 * p, 4)
            e(f"v_mfma_f32_16x16x32_bf16 {vr(vS+4*p,4)}, {vr(src+4*t,4)}, {vr(vQ+4*t,4)}, {cc}")

    for p, tile in enumerate(order):
        if tile in (0, 1, 2):
            kmfma(p, {0: vR0, 1: vR1, 2: vR2}[tile], False)
            runmax(p - 1)
        else:
            land(("K", tile, 0), ("K", tile, 1))
            kread(vST, st["slot"][("K", tile)])
            if p > 0:
                runmax(p - 1)
            kmfma(p, vST, True)
            release("K", tile)
        if p == 2:
            e(f"v_bfe_u32 v5, v{vLANE}, 2, 2")
            e(f"v_lshl_add_u32 v5, v{vGq}, 3, v5")
            e(f"v_and_b32 v6, 3, v{vLANE}")
            e("v_lshlrev_b32 v6, 3, v6")
            e("v_lshl_add_u32 v6, v5, 7, v6")
            e("v_bfe_u32 v7, v5, 1, 2")
            e(f"v_xor_b32 v8, {sWAVE}, v7")
            e("v_lshl_add_u32 v8, v8, 5, v6")
            e("v_add_u32 v7, 2, v7")
            e("v_and_b32 v7, 3, v7")
            e(f"v_xor_b32 v9, {sWAVE}, v7")
            e("v_lshl_add_u32 v9, v9, 5, v6")
            e("v_add_u32 v9, 512, v9")
            e("v_add_u32 v10, 0x10000, v8")
            e("v_add_u32 v11, 0x10000, v9")
            for t in range(8):
                off = (t >> 1) * RING + 24576 + (t & 1) * 32 * 128
                a0, a1 = (8, 9) if off <= 65535 else (10, 11)
                off &= 0xFFFF
                e(f"ds_read_b64_tr_b16 {vr(vWO+4*t,2)}, v{a0} offset:{off}")
                e(f"ds_read_b64_tr_b16 {vr(vWO+4*t+2,2)}, v{a1} offset:{off}")
            e("s_waitcnt lgkmcnt(0)")
            e("s_barrier")
            st["free"].append(3)
            try_issue()
            stamp(5)
    stamp(6)
    e("s_nop 7")
    e("s_nop 1")
    runmax(15)
    e(f"v_lshlrev_b32 v4, 2, v{vLANE}")
    for m_ in (16, 32):
        e(f"v_xor_b32 v5, {m_*4}, v4")
        e(f"ds_bpermute_b32 v6, v5, v{vM}")
        e("s_waitcnt lgkmcnt(0)")
        e(f"v_max_f32 v{vM}, v{vM}, v6")
    e(f"v_mul_f32 v{vM}, {sC}, v{vM}")
    e(f"v_and_b32 v5, 1, v{vN}")
    e("v_lshlrev_b32 v5, 4, v5")
    e(f"s_lshl_b32 s66, {sWAVE}, 2")
    e(f"s_add_u32 s66, s66, {MX}")
    e("v_add_u32 v6, s66, v5")
    e(f"ds_write_b32 v6, v{vM}")

    def pcalc(p):
        for r_ in range(4):
            e(f"v_fma_f32 v{vS+4*p+r_}, v{vS+4*p+r_}, {sC}, -v{vM}")
        for r_ in range(4):
            e(f"v_exp_f32 v{vS+4*p+r_}, v{vS+4*p+r_}")
        e("s_nop 0")
        e(f"v_cvt_pk_bf16_f32 v{vQ+2*p}, v{vS+4*p}, v{vS+4*p+1}")
        e(f"v_cvt_pk_bf16_f32 v{vQ+2*p+1}, v{vS+4*p+2}, v{vS+4*p+3}")
        e(f"v_add_f32 v4, v{vS+4*p}, v{vS+4*p+1}")
        e(f"v_add_f32 v5, v{vS+4*p+2}, v{vS+4*p+3}")
        e(f"v_add_f32 v{vL}, v{vL}, v4")
        e(f"v_add_f32 v{vL}, v{vL}, v5")

    stamp(7)
    vO = vR0
    for p, tile in enumerate(order):
        land(("V", tile, 0), ("V", tile, 1))
        ts_ = st["slot"][("V", tile)]
        for d in range(16):
            e(f"ds_read_b64_tr_b16 {vr(vST+2*d,2)}, v{vVA+(d&7)} offset:{ts_*8192 + (d>>3)*256}")
        if p < 8:
            pcalc(2 * p)
            pcalc(2 * p + 1)
        else:
            e("s_nop 0")
        for d in range(16):
            if d % 2 == 0:
                e(f"s_waitcnt lgkmcnt({14-d})")
            cc = "0" if p == 0 else vr(vO + 4 * d, 4)
            e(f"v_mfma_f32_16x16x16_bf16 {vr(vO+4*d,4)}, {vr(vST+2*d,2)}, {vr(vQ+2*p,2)}, {cc}")
        release("V", tile)
        if p == 8:
            e(f"v_and_b32 v5, 1, v{vN}")
            e("v_lshlrev_b32 v5, 6, v5")
            e(f"v_lshl_add_u32 v5, v{vGq}, 2, v5")
            e(f"s_lshl_b32 s66, {sWAVE}, 4")
            e(f"s_add_u32 s66, s66, {LX}")
            e("v_add_u32 v5, s66, v5")
            e(f"ds_write_b32 v5, v{vL}")
            e(f"v_lshlrev_b32 v8, 10, v{vN}")
            e(f"v_lshl_add_u32 v8, v{vGq}, 4, v8")
            e(f"s_lshl_b32 s66, {sWAVE}, 11")
            e(f"s_add_u32 s66, s66, {OPART}")
            e("v_add_u32 v8, s66, v8")
            e("v_lshrrev_b32 v9, 7, v0")
            e("v_and_b32 v10, 127, v0")
            e("v_lshlrev_b32 v11, 10, v9")
            e("v_lshl_add_u32 v11, v10, 3, v11")
            e(f"v_add_u32 v11, {OPART}, v11")
            e("v_lshlrev_b32 v28, 4, v9")
            e(f"v_add_u32 v28, {MX}, v28")
            e("v_lshlrev_b32 v29, 6, v9")
            e(f"v_add_u32 v29, {LX}, v29")
            e(f"s_lshl_b32 s68, {sG}, 1")
            e(f"s_add_u32 s68, s68, {sB}")
            e("s_lshl_b32 s68, s68, 3")
            e(f"s_add_u32 s68, s68, {sS}")
            e("s_lshl_b32 s68, s68, 12")
            e(f"s_add_u32 s69, s68, {WS_OA}")
            e(f"s_add_u32 s68, s68, {WS_OB}")
            e("v_lshlrev_b32 v7, 4, v0")
            e(f"v_cmp_gt_u32 s[62:63], 2, v{vN}")
            e(f"v_mov_b32 v6, {XM}")
            e("ds_read_b32 v6, v6")
            e("s_waitcnt lgkmcnt(0)")
            e(f"v_readfirstlane_b32 {sXM}, v6")
    stamp(8)
    e("s_mov_b64 s[66:67], exec")
    e("s_mov_b64 exec, s[62:63]")
    e("s_nop 5")
    for d in range(16):
        e(f"ds_write_b128 v8, {vr(vO+4*d,4)} offset:{d*64}")
    e("s_mov_b64 exec, s[66:67]")
    e("s_waitcnt lgkmcnt(0)")
    e("s_barrier")
    for w in range(4):
        e(f"ds_read_b64 {vr(vST+2*w,2)}, v11 offset:{w*2048}")
    e(f"ds_read_b128 {vr(vST+8,4)}, v28")
    for w in range(4):
        e(f"ds_read_b128 {vr(vST+12+4*w,4)}, v29 offset:{w*16}")
    e("v_mov_b32 v16, 0xfffffffe")
    e("s_waitcnt lgkmcnt(4)")
    m0 = vST + 8
    e(f"v_max3_f32 v14, v{m0}, v{m0+1}, v{m0+2}")
    e(f"v_max_f32 v14, v14, v{m0+3}")
    for w in range(4):
        e(f"v_sub_f32 v{m0+w}, v{m0+w}, v14")
    for w in range(4):
        e(f"v_exp_f32 v{m0+w}, v{m0+w}")
    e("s_waitcnt lgkmcnt(0)")
    e(f"v_mul_f32 v12, v{m0}, v{vST}")
    e(f"v_mul_f32 v13, v{m0}, v{vST+1}")
    for w in range(1, 4):
        e(f"v_fmac_f32 v12, v{m0+w}, v{vST+2*w}")
        e(f"v_fmac_f32 v13, v{m0+w}, v{vST+2*w+1}")
    for w in range(4):
        l0 = vST + 12 + 4 * w
        e(f"v_add_f32 v{l0}, v{l0}, v{l0+1}")
        e(f"v_add_f32 v{l0+2}, v{l0+2}, v{l0+3}")
        e(f"v_add_f32 v{l0}, v{l0}, v{l0+2}")
    e(f"v_mul_f32 v15, v{m0}, v{vST+12}")
    for w in range(1, 4):
        e(f"v_fmac_f32 v15, v{m0+w}, v{vST+12+4*w}")
    for r_ in (12, 13, 14, 15):
        e(f"v_min_u32 v{r_}, v{r_}, v16")
    e(f"buffer_store_dwordx4 v[12:15], v7, {SWS}, s69 offen")
    stamp(9)
    e("s_mov_b32 s61, s68")
    e("s_mov_b32 s60, 0")
    e(f"s_cmp_ge_u32 {sJ}, 14")
    e("s_cbranch_scc0 L_h1")
    e(f"buffer_store_dwordx4 v[12:15], v7, {SWS}, s68 offen sc1")
    e("s_branch L_final")
    e.label("L_h1")
    e("v_lshlrev_b32 v4, 15, v9")
    e("v_lshl_add_u32 v4, v10, 4, v4")
    e(f"s_lshl_b32 s66, {sHH}, 11")
    e(f"s_lshl_b32 s67, {sG}, 16")
    e("s_add_u32 s66, s66, s67")
    e(f"s_add_u32 s68, s66, {WS_OA}")
    e(f"s_add_u32 s69, s66, {WS_OB}")
    e(f"s_lshr_b32 s67, {sWAVE}, 1")
    e("s_lshl_b32 s67, s67, 3")
    e(f"s_lshr_b32 {sXM}, {sXM}, s67")
    if not apath or mapping != 0:
        e(f"s_mov_b32 {sXM}, 0")
    e(f"s_mov_b32 {sMISS}, 0xff")
    e(f"s_mov_b32 {sSPIN}, 0")
    e.label("L_h1poll")
    for s_ in range(8):
        e(f"s_bitcmp1_b32 {sMISS}, {s_}")
        e(f"s_cbranch_scc0 L_h1skip{s_}")
        e(f"s_bitcmp1_b32 {sXM}, {s_}")
        e(f"s_cselect_b32 s67, s68, s69")
        if s_:
            e(f"s_add_u32 s67, s67, {s_*4096}")
        e(f"buffer_load_dwordx4 {vr(vS+4*s_,4)}, v4, {SWS}, s67 offen sc1")
        e.label(f"L_h1skip{s_}")
    e("s_cmp_lg_u32 s60, 0")
    e("s_cbranch_scc1 L_h1w0")
    e("s_mov_b32 s60, 1")
    e(f"buffer_store_dwordx4 v[12:15], v7, {SWS}, s61 offen sc1")
    e("s_waitcnt vmcnt(1)")
    e("s_branch L_h1w1")
    e.label("L_h1w0")
    e("s_waitcnt vmcnt(0)")
    e.label("L_h1w1")
    for s_ in range(8):
        e(f"s_bitcmp1_b32 {sMISS}, {s_}")
        e(f"s_cbranch_scc0 L_h1chk{s_}")
        e(f"v_max3_u32 v7, v{vS+4*s_}, v{vS+4*s_+1}, v{vS+4*s_+2}")
        e(f"v_max_u32 v7, v7, v{vS+4*s_+3}")
        e("v_cmp_eq_u32 vcc, -1, v7")
        e(f"s_cmp_eq_u64 vcc, 0")
        e(f"s_cbranch_scc0 L_h1chk{s_}")
        e(f"s_bitset0_b32 {sMISS}, {s_}")
        e.label(f"L_h1chk{s_}")
    e(f"s_cmp_eq_u32 {sMISS}, 0")
    e("s_cbranch_scc1 L_h1done")
    e(f"s_add_u32 {sSPIN}, {sSPIN}, 1")
    e(f"s_cmp_lt_u32 {sSPIN}, 64")
    e(f"s_cselect_b32 {sXM}, {sXM}, 0")
    e(f"s_cmp_lt_u32 {sSPIN}, {SPIN_CAP}")
    e("s_cbranch_scc1 L_h1poll")
    e.label("L_h1done")
    stamp(10)
    e(f"v_max3_f32 v7, v{vS+2}, v{vS+6}, v{vS+10}")
    e(f"v_max3_f32 v7, v7, v{vS+14}, v{vS+18}")
    e(f"v_max3_f32 v7, v7, v{vS+22}, v{vS+26}")
    e(f"v_max_f32 v7, v7, v{vS+30}")
    for s_ in range(8):
        e(f"v_sub_f32 v{vS+4*s_+2}, v{vS+4*s_+2}, v7")
    for s_ in range(8):
        e(f"v_exp_f32 v{vS+4*s_+2}, v{vS+4*s_+2}")
    e("s_nop 0")
    e(f"v_mul_f32 v8, v{vS+2}, v{vS}")
    e(f"v_mul_f32 v11, v{vS+2}, v{vS+1}")
    e(f"v_mul_f32 v12, v{vS+2}, v{vS+3}")
    for s_ in range(1, 8):
        e(f"v_fmac_f32 v8, v{vS+4*s_+2}, v{vS+4*s_}")
        e(f"v_fmac_f32 v11, v{vS+4*s_+2}, v{vS+4*s_+1}")
        e(f"v_fmac_f32 v12, v{vS+4*s_+2}, v{vS+4*s_+3}")
    e("v_rcp_f32 v12, v12")
    e("v_lshlrev_b32 v13, 9, v9")
    e("v_lshl_add_u32 v13, v10, 2, v13")
    e("v_mul_f32 v8, v8, v12")
    e("v_mul_f32 v11, v11, v12")
    e(f"v_add_u32 v13, {OSB}, v13")
    e("v_cvt_pk_bf16_f32 v8, v8, v11")
    e("ds_write_b32 v13, v8")
    e(f"v_and_b32 v4, 1, v{vN}")
    e("v_lshlrev_b32 v4, 9, v4")
    e(f"v_lshl_add_u32 v4, v{vGq}, 4, v4")
    e(f"v_add_u32 v4, {OSB}, v4")
    e(f"v_lshlrev_b32 v5, 8, v{vN}")
    e(f"v_lshl_add_u32 v5, v{vGq}, 4, v5")
    e(f"s_lshl_b32 s66, {sG}, 1")
    e(f"s_add_u32 s66, s66, {sHH}")
    e("s_lshl_b32 s66, s66, 9")
    e(f"s_lshl_b32 s67, {sC7}, 14")
    e("s_add_u32 s66, s66, s67")
    e(f"s_lshl_b32 s67, {sWAVE}, 6")
    e("s_add_u32 s66, s66, s67")
    e(f"s_add_u32 s66, s66, {WS_YS}")
    e("s_waitcnt lgkmcnt(0)")
    e("s_barrier")
    for t in range(8):
        e(f"ds_read_b128 {vr(vST+4*t,4)}, v4 offset:{t*64}")
    for t in range(8):
        e(f"s_waitcnt lgkmcnt({7-t})")
        cc = "0" if t == 0 else vr(vS, 4)
        e(f"v_mfma_f32_16x16x32_bf16 {vr(vS,4)}, {vr(vWO+4*t,4)}, {vr(vST+4*t,4)}, {cc}")
    e("s_mov_b64 exec, s[62:63]")
    e("s_nop 7")
    for r_ in range(4):
        e(f"v_min_u32 v{vS+r_}, v{vS+r_}, v16")
    e(f"buffer_store_dwordx4 {vr(vS,4)}, v5, {SWS}, s66 offen sc1")
    stamp(11)
    if ts:
        e("s_mov_b64 exec, -1")
        e("s_branch L_ts")
    e("s_endpgm")

    e.label("L_final")
    e(f"s_lshl_b32 s66, {sG}, 1")
    e(f"s_add_u32 s66, s66, {sJ}")
    e("s_sub_u32 s66, s66, 14")
    e("s_cmp_ge_u32 s66, 14")
    e("s_cbranch_scc1 L_fin_exit")
    e("s_lshr_b32 s74, s66, 1")
    e("s_and_b32 s73, s66, 1")
    e("s_mul_i32 s66, s73, 896")
    e("s_add_u32 s52, s24, s66")
    e("s_addc_u32 s53, s25, 0")
    e("s_movk_i32 s54, 896")
    e("s_mov_b32 s55, 0x00020000")
    e("s_mov_b32 s60, s16")
    e("s_mov_b32 s61, s17")
    e("s_movk_i32 s62, 896")
    e("s_mov_b32 s63, 0x00020000")
    e("s_mov_b32 s56, s18")
    e("s_mov_b32 s57, s19")
    e("s_movk_i32 s58, 1792")
    e("s_mov_b32 s59, 0x00020000")
    e(f"v_lshlrev_b32 v4, 4, v{vLANE}")
    e(f"buffer_load_dwordx4 {vr(vST,4)}, v4, {SGW}, 0 offen")
    e(f"buffer_load_dwordx4 {vr(vST+4,4)}, v4, {SX}, 0 offen")
    e(f"v_mov_b32 v6, {XM}")
    e("ds_read2_b32 v[14:15], v6 offset0:1 offset1:2")
    e(f"v_lshlrev_b32 v5, 5, v{vLANE}")
    e("s_waitcnt vmcnt(0) lgkmcnt(0)")
    e("v_mov_b32 v7, 0")
    for k in range(4):
        e(f"v_lshlrev_b32 v8, 16, v{vST+k}")
        e(f"v_lshlrev_b32 v9, 16, v{vST+4+k}")
        e(f"v_and_b32 v10, 0xffff0000, v{vST+k}")
        e(f"v_and_b32 v11, 0xffff0000, v{vST+4+k}")
        e("v_mul_f32 v8, v8, v9")
        e("v_mul_f32 v10, v10, v11")
        e("v_cvt_pk_bf16_f32 v8, v8, v10")
        e("v_lshlrev_b32 v9, 16, v8")
        e("v_and_b32 v8, 0xffff0000, v8")
        e("v_add_f32 v7, v7, v9")
        e("v_add_f32 v7, v7, v8")
    e(f"v_lshlrev_b32 v8, 2, v{vLANE}")
    for m_ in (1, 2, 4, 8, 16, 32):
        e(f"v_xor_b32 v9, {m_*4}, v8")
        e("ds_bpermute_b32 v10, v9, v7")
        e("s_waitcnt lgkmcnt(0)")
        e("v_add_f32 v7, v7, v10")
    e("v_cvt_pk_bf16_f32 v7, v7, v7")
    e("v_lshlrev_b32 v7, 16, v7")
    e(f"v_mul_f32 v8, {f2u(-1.4426950408889634)}, v7")
    e("v_exp_f32 v8, v8")
    e("s_nop 0")
    e("v_add_f32 v8, 1.0, v8")
    e("v_rcp_f32 v8, v8")
    e("s_nop 0")
    e("v_cvt_pk_bf16_f32 v8, v8, v8")
    e("v_lshlrev_b32 v30, 16, v8")
    e("v_sub_f32 v9, 1.0, v30")
    e("v_cvt_pk_bf16_f32 v9, v9, v9")
    e("v_lshlrev_b32 v31, 16, v9")
    e(f"s_mov_b32 {sSPIN}, 0")
    e.label("L_fflag")
    e(f"buffer_load_dwordx4 {vr(vST,4)}, v5, {SWS}, 0 offen offset:{WS_XT} sc1" if WS_XT < 4096 else f"s_movk_i32 s66, {WS_XT}")
    e(f"buffer_load_dwordx4 {vr(vST,4)}, v5, {SWS}, s66 offen sc1")
    e(f"buffer_load_dwordx4 {vr(vST+4,4)}, v5, {SWS}, s66 offen offset:16 sc1")
    e("s_waitcnt vmcnt(0)")
    e(f"v_xor_b32 v6, v{vST+1}, v14")
    e(f"v_xor_b32 v7, v{vST+3}, v14")
    e(f"v_xor_b32 v8, v{vST+5}, v14")
    e(f"v_xor_b32 v9, v{vST+7}, v14")
    e("v_or_b32 v6, v6, v7")
    e("v_or3_b32 v6, v6, v8, v9")
    e("v_cmp_ne_u32 vcc, 0, v6")
    e("s_cmp_eq_u64 vcc, 0")
    e("s_cbranch_scc1 L_fflag_ok")
    e(f"s_add_u32 {sSPIN}, {sSPIN}, 1")
    e(f"s_cmp_lt_u32 {sSPIN}, {SPIN_CAP}")
    e("s_cbranch_scc1 L_fflag")
    e.label("L_fflag_ok")
    e(f"v_lshlrev_b32 v4, 9, v{vGq}")
    e(f"v_lshl_add_u32 v4, v{vN}, 2, v4")
    e("s_lshl_b32 s66, s74, 14")
    e("s_lshl_b32 s67, s73, 8")
    e("s_add_u32 s66, s66, s67")
    e(f"s_lshl_b32 s67, {sWAVE}, 6")
    e("s_add_u32 s66, s66, s67")
    e(f"s_add_u32 s66, s66, {WS_YS}")
    e("s_mul_i32 s68, s73, 896")
    e("s_lshl_b32 s67, s74, 7")
    e("s_add_u32 s68, s68, s67")
    e(f"s_lshl_b32 s67, {sWAVE}, 5")
    e("s_add_u32 s68, s68, s67")
    e(f"v_lshlrev_b32 v5, 1, v{vN}")
    e(f"v_lshlrev_b32 v9, 2, v{vLANE}")
    e("v_xor_b32 v10, 64, v9")
    e("v_xor_b32 v12, 128, v9")
    e(f"v_cmp_gt_u32 s[62:63], 16, v{vLANE}")
    e(f"s_mov_b32 {sMISS}, 0xff")
    e(f"s_mov_b32 {sSPIN}, 0")
    e.label("L_h2poll")
    for i in range(8):
        e(f"s_bitcmp1_b32 {sMISS}, {i}")
        e(f"s_cbranch_scc0 L_h2skip{i}")
        e(f"s_add_u32 s67, s66, {i*2048}")
        e(f"buffer_load_dword v{vS+i}, v4, {SWS}, s67 offen sc1")
        e.label(f"L_h2skip{i}")
    e("s_waitcnt vmcnt(0)")
    for i in range(8):
        e(f"s_bitcmp1_b32 {sMISS}, {i}")
        e(f"s_cbranch_scc0 L_h2chk{i}")
        e(f"v_cmp_eq_u32 vcc, -1, v{vS+i}")
        e(f"s_cmp_eq_u64 vcc, 0")
        e(f"s_cbranch_scc0 L_h2chk{i}")
        e(f"s_bitset0_b32 {sMISS}, {i}")
        e.label(f"L_h2chk{i}")
    e(f"s_cmp_eq_u32 {sMISS}, 0")
    e("s_cbranch_scc1 L_h2done")
    e(f"s_add_u32 {sSPIN}, {sSPIN}, 1")
    e(f"s_cmp_lt_u32 {sSPIN}, {SPIN_CAP}")
    e("s_cbranch_scc1 L_h2poll")
    e.label("L_h2done")
    stamp(10)
    e(f"v_add_f32 v8, v{vS}, v{vS+1}")
    e(f"v_add_f32 v7, v{vS+2}, v{vS+3}")
    e(f"v_add_f32 v13, v{vS+4}, v{vS+5}")
    e(f"v_add_f32 v11, v{vS+6}, v{vS+7}")
    e("v_add_f32 v8, v8, v7")
    e("v_add_f32 v13, v13, v11")
    e("v_mul_f32 v8, v8, v30")
    e("v_fmac_f32 v8, v13, v31")
    e("ds_bpermute_b32 v11, v10, v8")
    e("s_waitcnt lgkmcnt(0)")
    e("v_add_f32 v8, v8, v11")
    e("ds_bpermute_b32 v11, v12, v8")
    e("s_waitcnt lgkmcnt(0)")
    e("v_add_f32 v8, v8, v11")
    e("v_cvt_pk_bf16_f32 v8, v8, v8")
    e("s_mov_b64 exec, s[62:63]")
    e(f"buffer_store_short v8, v5, {SOUT}, s68 offen")
    e("s_or_b32 s66, s73, s74")
    e(f"s_or_b32 s66, s66, {sWAVE}")
    e("s_cmp_lg_u32 s66, 0")
    e("s_cbranch_scc1 L_nobump")
    e("v_add_u32 v15, 1, v15")
    e("v_mov_b32 v5, 0")
    e(f"buffer_store_dword v15, v5, {SWS}, 0 offen")
    e.label("L_nobump")
    stamp(11)
    if ts:
        e("s_mov_b64 exec, -1")
        e("s_branch L_ts")
    e.label("L_fin_exit")
    if ts:
        e("s_branch L_ts")
    e("s_endpgm")

    e.label("L_helper")
    e.q = []
    e("s_setprio 3")
    e(f"v_lshrrev_b32 v4, 2, v{vLANE}")
    e(f"v_and_b32 v5, 3, v{vLANE}")
    e(f"v_lshrrev_b32 v6, 5, v{vLANE}")
    e("v_lshlrev_b32 v6, 1, v6")
    e("v_xor_b32 v5, v5, v6")
    e("v_lshlrev_b32 v5, 4, v5")
    e(f"v_lshl_add_u32 v{vW}, v4, 13, v5")
    e(f"s_lshl_b32 s67, {sH}, 10")
    e(f"s_lshl_b32 s68, {sJ}, 6")
    e("s_add_u32 s67, s67, s68")
    e(f"v_and_b32 v4, 1, v{vN}")
    e("s_movk_i32 s66, 896")
    e("v_mul_lo_u32 v4, v4, s66")
    e(f"v_lshl_add_u32 v4, v{vGq}, 4, v4")
    e("v_mov_b32 v7, 0")
    e(f"v_mov_b32 v8, {XM}")
    e("v_mov_b32 v9, 0")
    e("ds_write_b32 v8, v9 offset:12")
    e(f"v_lshlrev_b32 v5, 4, v{vLANE}")
    e(f"s_lshl_b32 s68, {sG}, 1")
    e(f"s_add_u32 s68, s68, {sB}")
    e("s_lshl_b32 s68, s68, 3")
    e(f"s_add_u32 s68, s68, {sS}")
    e("s_lshl_b32 s68, s68, 12")
    e(f"s_add_u32 s70, s68, {WS_OA}")
    e(f"s_add_u32 s68, s68, {WS_OB}")
    e(f"s_lshl_b32 s69, {sG}, 1")
    e(f"s_add_u32 s69, s69, {sHH}")
    e("s_lshl_b32 s69, s69, 9")
    e(f"s_lshl_b32 s71, {sC7}, 14")
    e("s_add_u32 s69, s69, s71")
    e(f"s_add_u32 s69, s69, {WS_YS}")
    e(f"s_cmp_lt_u32 {sJ}, 14")
    e("s_cselect_b32 s69, s69, 0x40000000")
    e("v_mov_b32 v8, -1")
    e("v_mov_b32 v9, -1")
    e("v_mov_b32 v10, -1")
    e("v_mov_b32 v11, -1")
    e(f"v_cmp_gt_u32 s[62:63], 32, v{vLANE}")
    e("s_waitcnt lgkmcnt(0)")
    stamp(1)
    e("s_mov_b32 s36, s12")
    e("s_mov_b32 s37, s13")
    e("s_mov_b32 s38, 3670016")
    e("s_mov_b32 s39, 0x00020000")
    e(f"s_mov_b32 m0, {AUX}")
    e("s_mov_b32 s44, s22")
    e("s_mov_b32 s45, s23")
    e(f"s_mov_b32 s46, {WS_SIZE}")
    e("s_mov_b32 s47, 0x00020000")
    for i in range(28 if b0 != 2 else 0):
        e.vm(f"buffer_load_dwordx4 v{vW}, {SWQ}, s67 offen{NT} lds", "WQ")
        if i < 27:
            e("s_add_u32 m0, m0, 1024")
            e(f"s_add_u32 s67, s67, {16*8192}")
    if b0 == 1:
        e("s_barrier")
    e.vm(f"buffer_load_dword v26, v7, {SWS}, 0 offen", "EP")
    e("s_mov_b32 s52, s24")
    e("s_mov_b32 s53, s25")
    e("s_movk_i32 s54, 1792")
    e("s_mov_b32 s55, 0x00020000")
    XF = 128
    for t in range(14):
        e.vm(f"buffer_load_dwordx4 {vr(XF+4*t,4)}, v4, {SX}, 0 offen offset:{t*64}", "X")
    for q in range(4):
        e.vm(f"buffer_store_dwordx4 v[8:11], v5, {SWS}, s68 offen offset:{q*1024} sc1", "CL")
    for q in range(4):
        e.vm(f"buffer_store_dwordx4 v[8:11], v5, {SWS}, s70 offen offset:{q*1024} sc1", "CL")
    e("s_mov_b64 exec, s[62:63]")
    e.vm(f"buffer_store_dwordx4 v[8:11], v5, {SWS}, s69 offen sc1", "CL")
    e("s_mov_b64 exec, -1")
    stamp(2)
    e(f"v_bfe_u32 v12, v{vLANE}, 2, 2")
    e(f"v_lshl_add_u32 v12, v{vGq}, 3, v12")
    e(f"v_and_b32 v13, 3, v{vLANE}")
    e("v_lshlrev_b32 v13, 3, v13")
    e("v_lshl_add_u32 v13, v12, 6, v13")
    e(f"v_add_u32 v13, {AUX}, v13")
    e(f"v_and_b32 v14, 1, v{vGq}")
    for ct in range(2):
        e(f"v_xor_b32 v6, {ct}, v14")
        e(f"v_lshl_add_u32 v{16+ct}, v6, 5, v13")
    e(f"v_and_b32 v6, 1, v{vN}")
    e("v_lshlrev_b32 v6, 11, v6")
    e(f"v_lshrrev_b32 v7, 1, v{vN}")
    e("v_lshl_add_u32 v6, v7, 6, v6")
    e(f"v_lshl_add_u32 v6, v{vGq}, 4, v6")
    e("v_cmp_eq_u32 s[56:57], 1, v7")
    e(f"v_cmp_gt_u32 s[58:59], 4, v{vN}")
    e(f"s_lshl_b32 s66, {sG}, 12")
    e(f"s_lshl_b32 s67, {sJ}, 7")
    e("s_add_u32 s66, s66, s67")
    e(f"s_add_u32 s66, s66, {WS_QP}")
    e("s_getreg_b32 s72, hwreg(HW_REG_XCC_ID)")
    e("s_and_b32 s72, s72, 15")
    e(f"v_lshlrev_b32 v24, 4, v{vLANE}")
    e(f"s_lshl_b32 s68, {sG}, 12")
    e(f"s_lshl_b32 s67, {sB}, 11")
    e("s_add_u32 s68, s68, s67")
    e(f"s_add_u32 s68, s68, {WS_QP}")
    e(f"s_lshl_b32 s67, {sG}, 4")
    e(f"s_add_u32 s67, s67, {sJ}")
    e("s_lshl_b32 s67, s67, 3")
    e(f"s_add_u32 s67, s67, {WS_XT}")
    e("v_mov_b32 v28, s72")
    e("v_mov_b32 v7, 0")
    e(f"v_cmp_eq_u32 s[62:63], 0, v{vLANE}")
    e(f"v_lshlrev_b32 v25, 3, v{vLANE}")
    e(f"v_add_u32 v25, 0, v25")
    e.wait_tag("WQ", "X", "EP")
    if b0 == 2:
        e("s_barrier")
    stamp(3)
    e("s_mov_b32 s69, 0x9E3779B1")
    e("v_mul_lo_u32 v27, v26, s69")
    e("v_add_u32 v27, 0x7F4A7C15, v27")
    e("v_mov_b32 v29, v27")
    WF = 32

    def qreads(t):
        for ct in range(2):
            d = WF + (t & 3) * 8 + ct * 4
            e(f"ds_read_b64_tr_b16 {vr(d,2)}, v{16+ct} offset:{t*2048}")
            e(f"ds_read_b64_tr_b16 {vr(d+2,2)}, v{16+ct} offset:{t*2048+256}")
    for t in range(3):
        qreads(t)
    for t in range(14):
        ahead = min(13, t + 2) - t
        e(f"s_waitcnt lgkmcnt({4*ahead})")
        for ct in range(2):
            d = WF + (t & 3) * 8 + ct * 4
            cc = "0" if t == 0 else vr(184 + 4 * ct, 4)
            e(f"v_mfma_f32_16x16x32_bf16 {vr(184+4*ct,4)}, {vr(d,4)}, {vr(XF+4*t,4)}, {cc}")
        if t + 3 < 14:
            qreads(t + 3)
    e("s_waitcnt vmcnt(0)")
    e.q = []
    e("s_nop 7")
    e("v_cvt_pk_bf16_f32 v32, v184, v185")
    e("v_cvt_pk_bf16_f32 v33, v186, v187")
    e("v_cvt_pk_bf16_f32 v34, v188, v189")
    e("v_cvt_pk_bf16_f32 v35, v190, v191")
    e("v_mov_b32 v45, v27")
    e("v_mov_b32 v47, v27")
    e("v_cndmask_b32 v44, v32, v34, s[56:57]")
    e("v_cndmask_b32 v46, v33, v35, s[56:57]")
    e(f"s_add_u32 s69, s66, {WS_QA - WS_QP}")
    e(f"s_add_u32 s70, s67, {WS_XA - WS_XT}")
    e("s_mov_b64 exec, s[58:59]")
    e(f"buffer_store_dwordx4 v[44:47], v6, {SWS}, s69 offen")
    e("s_mov_b64 exec, s[62:63]")
    e(f"buffer_store_dwordx2 v[28:29], v7, {SWS}, s70 offen")
    e("s_mov_b64 exec, -1")
    stamp(6)
    e(f"s_lshl_b32 s74, {sG}, 7")
    e(f"s_add_u32 s74, s74, {WS_XT}")
    e(f"v_cmp_gt_u32 s[60:61], 16, v{vLANE}")
    e(f"s_mov_b32 {sSPIN}, 0")
    e("s_mov_b32 s73, 0")
    e.label("L_qpoll")
    e(f"s_cmp_lt_u32 {sSPIN}, {qa_rounds}")
    e("s_cbranch_scc1 L_qA")
    e("s_cmp_lg_u32 s73, 0")
    e("s_cbranch_scc1 L_qB0")
    e("s_mov_b32 s73, 1")
    e("s_mov_b64 exec, s[58:59]")
    e(f"buffer_store_dwordx4 v[44:47], v6, {SWS}, s66 offen sc1")
    e("s_mov_b64 exec, s[62:63]")
    e(f"buffer_store_dwordx2 v[28:29], v7, {SWS}, s67 offen sc1")
    e("s_mov_b64 exec, -1")
    e.label("L_qB0")
    e(f"s_and_b32 s69, {sSPIN}, 1")
    e("s_cmp_eq_u32 s69, 0")
    e("s_cbranch_scc1 L_qA")
    e("s_mov_b32 s69, s68")
    e("s_mov_b32 s70, s74")
    e("s_branch L_qL")
    e.label("L_qA")
    e(f"s_add_u32 s69, s68, {WS_QA - WS_QP}")
    e(f"s_add_u32 s70, s74, {WS_XA - WS_XT}")
    e.label("L_qL")
    e(f"buffer_load_dwordx4 v[64:67], v24, {SWS}, s69 offen sc1")
    e(f"buffer_load_dwordx4 v[68:71], v24, {SWS}, s69 offen offset:1024 sc1")
    e("s_mov_b64 exec, s[60:61]")
    e(f"buffer_load_dwordx2 v[30:31], v25, {SWS}, s70 offen sc1")
    e("s_mov_b64 exec, -1")
    e("v_mov_b32 v73, 0")
    e("s_waitcnt vmcnt(0)")
    e("v_xor_b32 v72, v65, v27")
    e("s_mov_b64 exec, s[60:61]")
    e("v_xor_b32 v73, v31, v27")
    e("s_mov_b64 exec, -1")
    e("v_xor_b32 v74, v67, v27")
    e("v_or3_b32 v72, v72, v73, v74")
    e("v_xor_b32 v74, v69, v27")
    e("v_xor_b32 v75, v71, v27")
    e("v_or3_b32 v72, v72, v74, v75")
    if ts:
        for rr in range(3):
            e(f"s_cmp_eq_u32 {sSPIN}, {rr}")
            e(f"s_cbranch_scc0 L_rs{rr}")
            stamp(9 + rr)
            e.label(f"L_rs{rr}")
    e("v_cmp_ne_u32 vcc, 0, v72")
    e("s_cmp_eq_u64 vcc, 0")
    e("s_cbranch_scc1 L_qready")
    e(f"s_add_u32 {sSPIN}, {sSPIN}, 1")
    e(f"s_cmp_lt_u32 {sSPIN}, {SPIN_CAP}")
    e("s_cbranch_scc1 L_qpoll")
    e.label("L_qready")
    stamp(7)
    if ts:
        e(f"s_mov_b32 s84, {sSPIN}")
    e("v_mov_b32 v65, v66")
    e("v_mov_b32 v69, v70")
    e(f"v_lshlrev_b32 v9, 3, v{vLANE}")
    e(f"v_add_u32 v9, {QS}, v9")
    e("ds_write_b64 v9, v[64:65]")
    e("ds_write_b64 v9, v[68:69] offset:512")
    e("s_mov_b64 exec, s[60:61]")
    e("v_cmp_eq_u32 vcc, s72, v30")
    e("s_mov_b64 exec, -1")
    e("s_nop 1")
    e("v_mov_b32 v8, vcc_lo")
    e("v_mov_b32 v9, v27")
    e("v_mov_b32 v10, v26")
    e("v_mov_b32 v11, 1")
    e(f"v_mov_b32 v12, {XM}")
    e("s_waitcnt lgkmcnt(0)")
    e("ds_write_b128 v12, v[8:11]")
    e("s_waitcnt lgkmcnt(0)")
    stamp(8)
    e("s_cmp_lg_u32 s73, 0")
    e("s_cbranch_scc1 L_qBd")
    e("s_mov_b64 exec, s[58:59]")
    e(f"buffer_store_dwordx4 v[44:47], v6, {SWS}, s66 offen sc1")
    e("s_mov_b64 exec, s[62:63]")
    e(f"buffer_store_dwordx2 v[28:29], v7, {SWS}, s67 offen sc1")
    e("s_mov_b64 exec, -1")
    e.label("L_qBd")
    e("s_barrier")
    e("s_barrier")
    if ts:
        e("s_branch L_ts")
    e("s_endpgm")

    if ts:
        e.label("L_ts")
        e("s_waitcnt lgkmcnt(0)")
        e("s_mov_b32 s44, s22")
        e("s_mov_b32 s45, s23")
        e(f"s_mov_b32 s46, {WS_SIZE}")
        e("s_mov_b32 s47, 0x00020000")
        e("s_mul_i32 s66, s2, 5")
        e("s_add_u32 s66, s66, s3")
        e("s_lshl_b32 s66, s66, 6")
        e(f"s_add_u32 s66, s66, {WS_TS}")
        e("v_mov_b32 v4, s66")
        e(f"v_cmp_eq_u32 vcc, 0, v{vLANE}")
        e("s_and_saveexec_b64 s[68:69], vcc")
        for i in range(12):
            e(f"v_mov_b32 v5, s{76+2*i}")
            e(f"buffer_store_dword v5, v4, {SWS}, 0 offen offset:{4*i}")
        e("s_endpgm")
    e.label("L_end")
    e("s_endpgm")
    A('.section .rodata,"a"')
    A(".p2align 6")
    A(f".amdhsa_kernel {NAME}_kernel")
    A(f"  .amdhsa_next_free_vgpr {NVGPR}")
    A("  .amdhsa_next_free_sgpr 102")
    A(f"  .amdhsa_accum_offset {NVGPR}")
    A("  .amdhsa_group_segment_fixed_size 0")
    A("  .amdhsa_kernarg_size 112")
    A("  .amdhsa_user_sgpr_count 2")
    A("  .amdhsa_user_sgpr_kernarg_segment_ptr 1")
    A("  .amdhsa_system_sgpr_workgroup_id_x 1")
    A(".end_amdhsa_kernel")
    return "\n".join(e.o) + "\n"


if __name__ == "__main__":
    out = sys.argv[1] if len(sys.argv) > 1 else "k2.s"
    kw = {}
    for a in sys.argv[2:]:
        if a == "ts":
            kw["ts"] = True
        elif "=" in a:
            k, v = a.split("=")
            kw[k] = int(v)
    open(out, "w").write(gen(**kw))
```

```python
import sys, struct

NAME = "gated_mix__gqa_block_cached__gqa_block_cached__decode"
HDR = open("cdna_kernels/%s.s.ref" % NAME).read().split("; Override launch geometry")[0]

WS_EP = 0x0
WS_XT = 0x1000
WS_QP = 0x40000
WS_QA = 0x60000
WS_XA = 0x2000
WS_OB = 0x80000
WS_OA = 0x180000
WS_YS = 0x280000
WS_TS = 0x2A0000
WS_SIZE = 0x2C0000
RING = 32768
AUX = 131072
QS = AUX + 28672
MX = QS + 1024
XM = MX + 64
LX = MX + 128
OSB = LX + 128
OPART = AUX
LDS_SIZE = 163840
SPIN_CAP = 40000


def f2u(f):
    return struct.unpack("<I", struct.pack("<f", f))[0]


class E:
    def __init__(self):
        self.o = []
        self.q = []

    def __call__(self, s):
        self.o.append("  " + s)

    def label(self, l):
        self.o.append(l + ":")

    def vm(self, s, tag):
        self.o.append("  " + s)
        self.q.append(tag)

    def wait_tag(self, *tags):
        idx = max((i for i, t in enumerate(self.q) if t in tags), default=-1)
        if idx < 0:
            return
        n = len(self.q) - 1 - idx
        self.wait_n(n)

    def wait_n(self, n):
        if n >= len(self.q):
            return
        self.o.append(f"  s_waitcnt vmcnt({min(n, 63)})")
        self.q = self.q[len(self.q) - n:] if n else []


def vr(a, n):
    return f"v[{a}:{a+n-1}]"


def gen(ts=False, stag=5, nt=True, apath=True, ni=10, quantum=2, qa_rounds=2, deep_pre=1, deep_from=99, ni_deep=32, b0=1, mapping=0):
    e = E()
    NT = " nt" if nt else ""
    sWAVE = "s3"
    sG, sJ, sBR, sH, sB, sS = "s4", "s5", "s6", "s7", "s26", "s27"
    SK, SV, SWQ, SWO, SWS, SDBG, SX, SOUT, SGW = ("s[28:31]", "s[32:35]", "s[36:39]", "s[40:43]", "s[44:47]",
                                                  "s[48:51]", "s[52:55]", "s[56:59]", "s[60:63]")
    sRING, sROT = "s64", "s65"
    sMISS, sSPIN, sC = "s70", "s71", "s72"
    sHH, sC7, sXM = "s73", "s74", "s75"
    vLANE, vN, vGq = 1, 2, 3
    vDMA = 12
    vKA = 16
    vVA = 20
    vW = 28
    vM, vL = 30, 31
    vST = 32
    vS = 64
    vQ = 128
    vWO = 160
    vR0, vR1 = 192, 224
    vR2 = vS + 32
    NVGPR = 256

    def stamp(i):
        if ts:
            e(f"s_memrealtime s[{76+2*i}:{77+2*i}]")

    A = e.o.append
    A(HDR.rstrip())
    A("; Override launch geometry by editing the next line (default: block=256,")
    A(f"; @launch grid=(256,1,1) block=(320,1,1) lds={LDS_SIZE}")
    A('.amdgcn_target "amdgcn-amd-amdhsa--gfx950"')
    A(".text")
    A(f".globl {NAME}_kernel")
    A(".p2align 8")
    A(f".type {NAME}_kernel,@function")
    A(f"{NAME}_kernel:")
    e("s_cmp_ge_u32 s2, 256")
    e("s_cbranch_scc1 L_end")
    e("s_and_b32 s66, s2, 7")
    e("s_lshr_b32 s67, s2, 3")
    if mapping == 0:
        e("s_lshr_b32 s6, s66, 2")
    else:
        e("s_lshr_b32 s6, s2, 7")
    e("s_mul_i32 s68, s6, 40")
    e("s_add_u32 s68, s68, 8")
    e("s_load_dwordx8 s[8:15], s[0:1], s68")
    e("s_load_dwordx8 s[16:23], s[0:1], 80")
    e("s_load_dwordx2 s[24:25], s[0:1], 0")
    stamp(0)
    if mapping == 0:
        e("s_and_b32 s69, s67, 1")
        e("s_lshl_b32 s4, s66, 1")
        e("s_add_u32 s4, s4, s69")
        e("s_lshr_b32 s5, s67, 1")
        e("s_and_b32 s7, s4, 7")
        e("s_lshr_b32 s26, s5, 3")
        e("s_and_b32 s27, s5, 7")
    else:
        e("s_lshr_b32 s4, s67, 1")
        e("s_and_b32 s26, s67, 1")
        e("s_lshl_b32 s5, s66, 1")
        e("s_add_u32 s5, s5, s26")
        e("s_and_b32 s7, s4, 7")
        e("s_add_u32 s27, s66, s4")
        e("s_and_b32 s27, s27, 7")
    e(f"v_lshrrev_b32 v4, 6, v0")
    e(f"v_and_b32 v{vLANE}, 63, v0")
    e("v_readfirstlane_b32 s3, v4")
    e(f"v_and_b32 v{vN}, 15, v{vLANE}")
    e(f"v_lshrrev_b32 v{vGq}, 4, v{vLANE}")
    e("s_and_b32 s73, s5, 1")
    e("s_lshr_b32 s74, s5, 1")
    e(f"v_lshrrev_b32 v4, 3, v{vLANE}")
    e(f"v_and_b32 v5, 7, v{vLANE}")
    e(f"v_lshrrev_b32 v6, 4, v{vLANE}")
    e("v_lshlrev_b32 v6, 1, v6")
    e("v_xor_b32 v5, v5, v6")
    e("v_lshlrev_b32 v5, 4, v5")
    e("s_cmp_eq_u32 s3, 4")
    e("s_cbranch_scc1 L_helper")

    e("s_movk_i32 s66, 896")
    e(f"v_mad_u32_u24 v{vW+1}, v4, s66, v5")
    e(f"v_lshrrev_b32 v4, 5, v{vLANE}")
    e(f"v_and_b32 v5, 31, v{vLANE}")
    for i in range(4):
        e(f"v_add_u32 v6, {2*i}, v4")
        e("v_lshlrev_b32 v6, 1, v6")
        e("v_xor_b32 v6, v6, v5")
        e("v_lshlrev_b32 v6, 4, v6")
        e(f"v_lshl_add_u32 v{vDMA+i}, v4, 9, v6")
    e(f"v_lshrrev_b32 v4, 2, v{vLANE}")
    e(f"v_and_b32 v5, 3, v{vLANE}")
    e(f"v_lshrrev_b32 v6, 5, v{vLANE}")
    e("v_lshlrev_b32 v6, 1, v6")
    e("v_xor_b32 v5, v5, v6")
    e("v_lshlrev_b32 v5, 4, v5")
    e(f"v_lshl_add_u32 v{vW}, v4, 13, v5")
    e(f"s_lshl_b32 s56, {sH}, 10")
    e(f"s_lshl_b32 s57, {sJ}, 6")
    e("s_add_u32 s56, s56, s57")
    e(f"s_mul_i32 s57, {sWAVE}, {7*16*8192}")
    e("s_add_u32 s56, s56, s57")
    e(f"s_mul_i32 s57, {sWAVE}, 7168")
    e(f"s_add_u32 s57, s57, {AUX}")
    e(f"s_lshl_b32 {sRING}, {sWAVE}, 15")
    e("s_lshl_b32 s66, s2, 2")
    e(f"s_add_u32 s66, s66, {sWAVE}")
    e(f"s_mul_i32 s66, s66, {stag}")
    e("s_and_b32 s66, s66, 31")
    e(f"s_lshl_b32 {sROT}, s66, 12")
    e(f"s_lshl_b32 s66, {sB}, 3")
    e(f"s_add_u32 s66, s66, {sH}")
    e("s_lshl_b32 s66, s66, 22")
    e(f"s_lshl_b32 s67, {sS}, 19")
    e("s_add_u32 s66, s66, s67")
    e(f"s_lshl_b32 s67, {sWAVE}, 17")
    e("s_add_u32 s66, s66, s67")
    e(f"s_lshl_b32 s68, {sH}, 1")
    e(f"s_add_u32 s68, s68, {sHH}")
    e("s_lshl_b32 s68, s68, 8")
    e(f"s_lshl_b32 s69, {sWAVE}, 6")
    e("s_add_u32 s68, s68, s69")
    e("s_mul_i32 s68, s68, 896")
    e(f"s_lshl_b32 s69, {sC7}, 7")
    e("s_add_u32 s68, s68, s69")
    e(f"s_cmp_lt_u32 {sJ}, 14")
    e("s_cselect_b32 s68, s68, 0x40000000")
    e("s_waitcnt lgkmcnt(0)")
    stamp(1)
    e("s_add_u32 s28, s8, s66")
    e("s_addc_u32 s29, s9, 0")
    e("s_mov_b32 s30, 0x20000")
    e("s_mov_b32 s31, 0x00020000")
    e("s_mov_b32 s40, s14")
    e("s_mov_b32 s41, s15")
    e("s_mov_b32 s42, 3670016")
    e("s_mov_b32 s43, 0x00020000")
    e("s_add_u32 s32, s10, s66")
    e("s_addc_u32 s33, s11, 0")
    e("s_mov_b32 s34, 0x20000")
    e("s_mov_b32 s35, 0x00020000")
    if b0 == 1:
        e("s_barrier")
    if b0 == 2:
        e("s_mov_b32 s36, s12")
        e("s_mov_b32 s37, s13")
        e("s_mov_b32 s38, 3670016")
        e("s_mov_b32 s39, 0x00020000")
        for i in range(7):
            e(f"s_add_u32 m0, s57, {i*1024}" if i else "s_mov_b32 m0, s57")
            e(f"s_add_u32 s58, s56, {i*16*8192}" if i else "s_mov_b32 s58, s56")
            e.vm(f"buffer_load_dwordx4 v{vW}, {SWQ}, s58 offen{NT} lds", "WQ")

    order = [3, 4, 5, 0, 1, 2] + list(range(6, 16))
    ulist = [("W", 0, 0), ("W", 0, 1)]
    for t in range(16):
        ulist += [("K", t, 0), ("K", t, 1)]
    for t in order:
        ulist += [("V", t, 0), ("V", t, 1)]
    ilist = [(k, t, u, i) for (k, t, u) in ulist for i in range(4)]
    st = dict(next=0, inflight=[], free=[0, 1, 2], slot={}, landed=set())

    def emit_issue(item):
        kind, tile, u, i = item
        if kind == "W":
            ii = u * 4 + i
            e(f"s_add_u32 m0, {sRING}, {24576 + ii*1024}")
            e(f"s_add_u32 s70, s68, {ii*8*896}")
            e.vm(f"buffer_load_dwordx4 v{vW+1}, {SWO}, s70 offen{NT} lds", item)
            return
        tslot = st["slot"][(kind, tile)]
        srd = SK if kind == "K" else SV
        off = (2 * tile + u) * 4096
        so = "s75x" if off else sROT
        so = "s61" if off else sROT
        if i == 0:
            e(f"s_add_u32 m0, {sRING}, {tslot*8192 + u*4096}")
            if off:
                e(f"s_add_u32 s61, {sROT}, {off}")
                e("s_and_b32 s61, s61, 0x1ffff")
            else:
                e("s_nop 0")
        e.vm(f"buffer_load_dwordx4 v{vDMA+i}, {srd}, {so} offen offset:{i*1024}{NT} lds", item)

    def try_issue():
        while st["next"] < len(ilist):
            item = ilist[st["next"]]
            kind, tile, u, i = item
            lim = ni_deep if (kind == "V" and order.index(tile) >= deep_from) else ni
            if len(st["inflight"]) + quantum > lim:
                return
            if kind != "W" and u == 0 and i == 0:
                if not st["free"]:
                    return
                st["slot"][(kind, tile)] = st["free"].pop(0)
            for q_ in range(quantum):
                item = ilist[st["next"]]
                emit_issue(item)
                st["inflight"].append(item)
                st["next"] += 1

    def land(*units):
        for un in units:
            last = un + (3,)
            while last not in st["landed"]:
                if not st["inflight"]:
                    try_issue()
                    assert st["inflight"], ("stuck", un)
                grp = st["inflight"][:quantum]
                e.wait_tag(grp[-1])
                for g_ in grp:
                    st["landed"].add(g_)
                st["inflight"] = st["inflight"][quantum:]
                try_issue()

    def release(kind, tile):
        st["free"].append(st["slot"][(kind, tile)])
        try_issue()

    try_issue()
    stamp(2)
    e(f"v_and_b32 v4, 7, v{vN}")
    e("v_lshlrev_b32 v4, 1, v4")
    e(f"v_lshlrev_b32 v5, 9, v{vN}")
    e(f"v_add_u32 v5, {sRING}, v5")
    for tt in range(4):
        e(f"v_add_u32 v6, {4*tt}, v{vGq}")
        e("v_xor_b32 v6, v6, v4")
        e(f"v_lshl_add_u32 v{vKA+tt}, v6, 4, v5")
    e(f"v_lshrrev_b32 v4, 2, v{vLANE}")
    e(f"v_and_b32 v5, 3, v{vLANE}")
    e("v_lshlrev_b32 v5, 3, v5")
    e(f"v_lshl_add_u32 v5, v4, 9, v5")
    e(f"v_add_u32 v5, {sRING}, v5")
    e("v_and_b32 v4, 7, v4")
    for d in range(8):
        e(f"v_xor_b32 v6, {d}, v4")
        e(f"v_lshl_add_u32 v{vVA+d}, v6, 5, v5")
    e("s_mov_b32 s44, s22")
    e("s_mov_b32 s45, s23")
    e(f"s_mov_b32 s46, {WS_SIZE}")
    e("s_mov_b32 s47, 0x00020000")
    e(f"s_mov_b32 {sC}, {f2u(1.4426950408889634/16.0)}")
    e(f"v_mov_b32 v{vM}, 0xff800000")
    e(f"v_mov_b32 v{vL}, 0")

    if b0 == 2:
        e.wait_tag("WQ")
        e("s_barrier")

    def kread(dst, tslot):
        for t in range(8):
            e(f"ds_read_b128 {vr(dst+4*t,4)}, v{vKA+(t&3)} offset:{tslot*8192 + (t>>2)*256}")

    for tile, R in ((0, vR0), (1, vR1), (2, vR2)):
        land(("K", tile, 0), ("K", tile, 1))
        kread(R, st["slot"][("K", tile)])
        e("s_waitcnt lgkmcnt(0)")
        release("K", tile)
    land(("W", 0, 0), ("W", 0, 1), ("K", 5, 0), ("K", 5, 1)) if deep_pre else land(("W", 0, 0), ("W", 0, 1))
    stamp(3)
    e("s_barrier")
    stamp(4)
    e(f"v_and_b32 v4, 1, v{vN}")
    e("v_lshlrev_b32 v4, 9, v4")
    e(f"v_lshl_add_u32 v4, v{vGq}, 4, v4")
    e(f"v_add_u32 v4, {QS}, v4")
    for t in range(8):
        e(f"ds_read_b128 {vr(vQ+4*t,4)}, v4 offset:{t*64}")

    def runmax(p):
        e(f"v_max3_f32 v{vM}, v{vM}, v{vS+4*p}, v{vS+4*p+1}")
        e(f"v_max3_f32 v{vM}, v{vM}, v{vS+4*p+2}, v{vS+4*p+3}")

    def kmfma(p, src, counted):
        for t in range(8):
            if counted:
                e(f"s_waitcnt lgkmcnt({7-t})")
            cc = "0" if t == 0 else vr(vS + 4 * p, 4)
            e(f"v_mfma_f32_16x16x32_bf16 {vr(vS+4*p,4)}, {vr(src+4*t,4)}, {vr(vQ+4*t,4)}, {cc}")

    for p, tile in enumerate(order):
        if tile in (0, 1, 2):
            kmfma(p, {0: vR0, 1: vR1, 2: vR2}[tile], False)
            runmax(p - 1)
        else:
            land(("K", tile, 0), ("K", tile, 1))
            kread(vST, st["slot"][("K", tile)])
            if p > 0:
                runmax(p - 1)
            kmfma(p, vST, True)
            release("K", tile)
        if p == 2:
            e(f"v_bfe_u32 v5, v{vLANE}, 2, 2")
            e(f"v_lshl_add_u32 v5, v{vGq}, 3, v5")
            e(f"v_and_b32 v6, 3, v{vLANE}")
            e("v_lshlrev_b32 v6, 3, v6")
            e("v_lshl_add_u32 v6, v5, 7, v6")
            e("v_bfe_u32 v7, v5, 1, 2")
            e(f"v_xor_b32 v8, {sWAVE}, v7")
            e("v_lshl_add_u32 v8, v8, 5, v6")
            e("v_add_u32 v7, 2, v7")
            e("v_and_b32 v7, 3, v7")
            e(f"v_xor_b32 v9, {sWAVE}, v7")
            e("v_lshl_add_u32 v9, v9, 5, v6")
            e("v_add_u32 v9, 512, v9")
            e("v_add_u32 v10, 0x10000, v8")
            e("v_add_u32 v11, 0x10000, v9")
            for t in range(8):
                off = (t >> 1) * RING + 24576 + (t & 1) * 32 * 128
                a0, a1 = (8, 9) if off <= 65535 else (10, 11)
                off &= 0xFFFF
                e(f"ds_read_b64_tr_b16 {vr(vWO+4*t,2)}, v{a0} offset:{off}")
                e(f"ds_read_b64_tr_b16 {vr(vWO+4*t+2,2)}, v{a1} offset:{off}")
            e("s_waitcnt lgkmcnt(0)")
            e("s_barrier")
            st["free"].append(3)
            try_issue()
            stamp(5)
    stamp(6)
    e("s_nop 7")
    e("s_nop 1")
    runmax(15)
    e(f"v_lshlrev_b32 v4, 2, v{vLANE}")
    for m_ in (16, 32):
        e(f"v_xor_b32 v5, {m_*4}, v4")
        e(f"ds_bpermute_b32 v6, v5, v{vM}")
        e("s_waitcnt lgkmcnt(0)")
        e(f"v_max_f32 v{vM}, v{vM}, v6")
    e(f"v_mul_f32 v{vM}, {sC}, v{vM}")
    e(f"v_and_b32 v5, 1, v{vN}")
    e("v_lshlrev_b32 v5, 4, v5")
    e(f"s_lshl_b32 s66, {sWAVE}, 2")
    e(f"s_add_u32 s66, s66, {MX}")
    e("v_add_u32 v6, s66, v5")
    e(f"ds_write_b32 v6, v{vM}")

    def pcalc(p):
        for r_ in range(4):
            e(f"v_fma_f32 v{vS+4*p+r_}, v{vS+4*p+r_}, {sC}, -v{vM}")
        for r_ in range(4):
            e(f"v_exp_f32 v{vS+4*p+r_}, v{vS+4*p+r_}")
        e("s_nop 0")
        e(f"v_cvt_pk_bf16_f32 v{vQ+2*p}, v{vS+4*p}, v{vS+4*p+1}")
        e(f"v_cvt_pk_bf16_f32 v{vQ+2*p+1}, v{vS+4*p+2}, v{vS+4*p+3}")
        e(f"v_add_f32 v4, v{vS+4*p}, v{vS+4*p+1}")
        e(f"v_add_f32 v5, v{vS+4*p+2}, v{vS+4*p+3}")
        e(f"v_add_f32 v{vL}, v{vL}, v4")
        e(f"v_add_f32 v{vL}, v{vL}, v5")

    stamp(7)
    vO = vR0
    for p, tile in enumerate(order):
        land(("V", tile, 0), ("V", tile, 1))
        ts_ = st["slot"][("V", tile)]
        for d in range(16):
            e(f"ds_read_b64_tr_b16 {vr(vST+2*d,2)}, v{vVA+(d&7)} offset:{ts_*8192 + (d>>3)*256}")
        if p < 8:
            pcalc(2 * p)
            pcalc(2 * p + 1)
        else:
            e("s_nop 0")
        for d in range(16):
            if d % 2 == 0:
                e(f"s_waitcnt lgkmcnt({14-d})")
            cc = "0" if p == 0 else vr(vO + 4 * d, 4)
            e(f"v_mfma_f32_16x16x16_bf16 {vr(vO+4*d,4)}, {vr(vST+2*d,2)}, {vr(vQ+2*p,2)}, {cc}")
        release("V", tile)
        if p == 8:
            e(f"v_and_b32 v5, 1, v{vN}")
            e("v_lshlrev_b32 v5, 6, v5")
            e(f"v_lshl_add_u32 v5, v{vGq}, 2, v5")
            e(f"s_lshl_b32 s66, {sWAVE}, 4")
            e(f"s_add_u32 s66, s66, {LX}")
            e("v_add_u32 v5, s66, v5")
            e(f"ds_write_b32 v5, v{vL}")
            e(f"v_lshlrev_b32 v8, 10, v{vN}")
            e(f"v_lshl_add_u32 v8, v{vGq}, 4, v8")
            e(f"s_lshl_b32 s66, {sWAVE}, 11")
            e(f"s_add_u32 s66, s66, {OPART}")
            e("v_add_u32 v8, s66, v8")
            e("v_lshrrev_b32 v9, 7, v0")
            e("v_and_b32 v10, 127, v0")
            e("v_lshlrev_b32 v11, 10, v9")
            e("v_lshl_add_u32 v11, v10, 3, v11")
            e(f"v_add_u32 v11, {OPART}, v11")
            e("v_lshlrev_b32 v28, 4, v9")
            e(f"v_add_u32 v28, {MX}, v28")
            e("v_lshlrev_b32 v29, 6, v9")
            e(f"v_add_u32 v29, {LX}, v29")
            e(f"s_lshl_b32 s68, {sG}, 1")
            e(f"s_add_u32 s68, s68, {sB}")
            e("s_lshl_b32 s68, s68, 3")
            e(f"s_add_u32 s68, s68, {sS}")
            e("s_lshl_b32 s68, s68, 12")
            e(f"s_add_u32 s69, s68, {WS_OA}")
            e(f"s_add_u32 s68, s68, {WS_OB}")
            e("v_lshlrev_b32 v7, 4, v0")
            e(f"v_cmp_gt_u32 s[62:63], 2, v{vN}")
            e(f"v_mov_b32 v6, {XM}")
            e("ds_read_b32 v6, v6")
            e("s_waitcnt lgkmcnt(0)")
            e(f"v_readfirstlane_b32 {sXM}, v6")
    stamp(8)
    e("s_mov_b64 s[66:67], exec")
    e("s_mov_b64 exec, s[62:63]")
    e("s_nop 5")
    for d in range(16):
        e(f"ds_write_b128 v8, {vr(vO+4*d,4)} offset:{d*64}")
    e("s_mov_b64 exec, s[66:67]")
    e("s_waitcnt lgkmcnt(0)")
    e("s_barrier")
    for w in range(4):
        e(f"ds_read_b64 {vr(vST+2*w,2)}, v11 offset:{w*2048}")
    e(f"ds_read_b128 {vr(vST+8,4)}, v28")
    for w in range(4):
        e(f"ds_read_b128 {vr(vST+12+4*w,4)}, v29 offset:{w*16}")
    e("v_mov_b32 v16, 0xfffffffe")
    e("s_waitcnt lgkmcnt(4)")
    m0 = vST + 8
    e(f"v_max3_f32 v14, v{m0}, v{m0+1}, v{m0+2}")
    e(f"v_max_f32 v14, v14, v{m0+3}")
    for w in range(4):
        e(f"v_sub_f32 v{m0+w}, v{m0+w}, v14")
    for w in range(4):
        e(f"v_exp_f32 v{m0+w}, v{m0+w}")
    e("s_waitcnt lgkmcnt(0)")
    e(f"v_mul_f32 v12, v{m0}, v{vST}")
    e(f"v_mul_f32 v13, v{m0}, v{vST+1}")
    for w in range(1, 4):
        e(f"v_fmac_f32 v12, v{m0+w}, v{vST+2*w}")
        e(f"v_fmac_f32 v13, v{m0+w}, v{vST+2*w+1}")
    for w in range(4):
        l0 = vST + 12 + 4 * w
        e(f"v_add_f32 v{l0}, v{l0}, v{l0+1}")
        e(f"v_add_f32 v{l0+2}, v{l0+2}, v{l0+3}")
        e(f"v_add_f32 v{l0}, v{l0}, v{l0+2}")
    e(f"v_mul_f32 v15, v{m0}, v{vST+12}")
    for w in range(1, 4):
        e(f"v_fmac_f32 v15, v{m0+w}, v{vST+12+4*w}")
    for r_ in (12, 13, 14, 15):
        e(f"v_min_u32 v{r_}, v{r_}, v16")
    e(f"buffer_store_dwordx4 v[12:15], v7, {SWS}, s69 offen")
    stamp(9)
    e("s_mov_b32 s61, s68")
    e("s_mov_b32 s60, 0")
    e(f"s_cmp_ge_u32 {sJ}, 14")
    e("s_cbranch_scc0 L_h1")
    e(f"buffer_store_dwordx4 v[12:15], v7, {SWS}, s68 offen sc1")
    e("s_branch L_final")
    e.label("L_h1")
    e("v_lshlrev_b32 v4, 15, v9")
    e("v_lshl_add_u32 v4, v10, 4, v4")
    e(f"s_lshl_b32 s66, {sHH}, 11")
    e(f"s_lshl_b32 s67, {sG}, 16")
    e("s_add_u32 s66, s66, s67")
    e(f"s_add_u32 s68, s66, {WS_OA}")
    e(f"s_add_u32 s69, s66, {WS_OB}")
    e(f"s_lshr_b32 s67, {sWAVE}, 1")
    e("s_lshl_b32 s67, s67, 3")
    e(f"s_lshr_b32 {sXM}, {sXM}, s67")
    if not apath or mapping != 0:
        e(f"s_mov_b32 {sXM}, 0")
    e(f"s_mov_b32 {sMISS}, 0xff")
    e(f"s_mov_b32 {sSPIN}, 0")
    e.label("L_h1poll")
    for s_ in range(8):
        e(f"s_bitcmp1_b32 {sMISS}, {s_}")
        e(f"s_cbranch_scc0 L_h1skip{s_}")
        e(f"s_bitcmp1_b32 {sXM}, {s_}")
        e(f"s_cselect_b32 s67, s68, s69")
        if s_:
            e(f"s_add_u32 s67, s67, {s_*4096}")
        e(f"buffer_load_dwordx4 {vr(vS+4*s_,4)}, v4, {SWS}, s67 offen sc1")
        e.label(f"L_h1skip{s_}")
    e("s_cmp_lg_u32 s60, 0")
    e("s_cbranch_scc1 L_h1w0")
    e("s_mov_b32 s60, 1")
    e(f"buffer_store_dwordx4 v[12:15], v7, {SWS}, s61 offen sc1")
    e("s_waitcnt vmcnt(1)")
    e("s_branch L_h1w1")
    e.label("L_h1w0")
    e("s_waitcnt vmcnt(0)")
    e.label("L_h1w1")
    for s_ in range(8):
        e(f"s_bitcmp1_b32 {sMISS}, {s_}")
        e(f"s_cbranch_scc0 L_h1chk{s_}")
        e(f"v_max3_u32 v7, v{vS+4*s_}, v{vS+4*s_+1}, v{vS+4*s_+2}")
        e(f"v_max_u32 v7, v7, v{vS+4*s_+3}")
        e("v_cmp_eq_u32 vcc, -1, v7")
        e(f"s_cmp_eq_u64 vcc, 0")
        e(f"s_cbranch_scc0 L_h1chk{s_}")
        e(f"s_bitset0_b32 {sMISS}, {s_}")
        e.label(f"L_h1chk{s_}")
    e(f"s_cmp_eq_u32 {sMISS}, 0")
    e("s_cbranch_scc1 L_h1done")
    e(f"s_add_u32 {sSPIN}, {sSPIN}, 1")
    e(f"s_cmp_lt_u32 {sSPIN}, 64")
    e(f"s_cselect_b32 {sXM}, {sXM}, 0")
    e(f"s_cmp_lt_u32 {sSPIN}, {SPIN_CAP}")
    e("s_cbranch_scc1 L_h1poll")
    e.label("L_h1done")
    stamp(10)
    e(f"v_max3_f32 v7, v{vS+2}, v{vS+6}, v{vS+10}")
    e(f"v_max3_f32 v7, v7, v{vS+14}, v{vS+18}")
    e(f"v_max3_f32 v7, v7, v{vS+22}, v{vS+26}")
    e(f"v_max_f32 v7, v7, v{vS+30}")
    for s_ in range(8):
        e(f"v_sub_f32 v{vS+4*s_+2}, v{vS+4*s_+2}, v7")
    for s_ in range(8):
        e(f"v_exp_f32 v{vS+4*s_+2}, v{vS+4*s_+2}")
    e("s_nop 0")
    e(f"v_mul_f32 v8, v{vS+2}, v{vS}")
    e(f"v_mul_f32 v11, v{vS+2}, v{vS+1}")
    e(f"v_mul_f32 v12, v{vS+2}, v{vS+3}")
    for s_ in range(1, 8):
        e(f"v_fmac_f32 v8, v{vS+4*s_+2}, v{vS+4*s_}")
        e(f"v_fmac_f32 v11, v{vS+4*s_+2}, v{vS+4*s_+1}")
        e(f"v_fmac_f32 v12, v{vS+4*s_+2}, v{vS+4*s_+3}")
    e("v_rcp_f32 v12, v12")
    e("v_lshlrev_b32 v13, 9, v9")
    e("v_lshl_add_u32 v13, v10, 2, v13")
    e("v_mul_f32 v8, v8, v12")
    e("v_mul_f32 v11, v11, v12")
    e(f"v_add_u32 v13, {OSB}, v13")
    e("v_cvt_pk_bf16_f32 v8, v8, v11")
    e("ds_write_b32 v13, v8")
    e(f"v_and_b32 v4, 1, v{vN}")
    e("v_lshlrev_b32 v4, 9, v4")
    e(f"v_lshl_add_u32 v4, v{vGq}, 4, v4")
    e(f"v_add_u32 v4, {OSB}, v4")
    e(f"v_lshlrev_b32 v5, 8, v{vN}")
    e(f"v_lshl_add_u32 v5, v{vGq}, 4, v5")
    e(f"s_lshl_b32 s66, {sG}, 1")
    e(f"s_add_u32 s66, s66, {sHH}")
    e("s_lshl_b32 s66, s66, 9")
    e(f"s_lshl_b32 s67, {sC7}, 14")
    e("s_add_u32 s66, s66, s67")
    e(f"s_lshl_b32 s67, {sWAVE}, 6")
    e("s_add_u32 s66, s66, s67")
    e(f"s_add_u32 s66, s66, {WS_YS}")
    e("s_waitcnt lgkmcnt(0)")
    e("s_barrier")
    for t in range(8):
        e(f"ds_read_b128 {vr(vST+4*t,4)}, v4 offset:{t*64}")
    for t in range(8):
        e(f"s_waitcnt lgkmcnt({7-t})")
        cc = "0" if t == 0 else vr(vS, 4)
        e(f"v_mfma_f32_16x16x32_bf16 {vr(vS,4)}, {vr(vWO+4*t,4)}, {vr(vST+4*t,4)}, {cc}")
    e("s_mov_b64 exec, s[62:63]")
    e("s_nop 7")
    for r_ in range(4):
        e(f"v_min_u32 v{vS+r_}, v{vS+r_}, v16")
    e(f"buffer_store_dwordx4 {vr(vS,4)}, v5, {SWS}, s66 offen sc1")
    stamp(11)
    if ts:
        e("s_mov_b64 exec, -1")
        e("s_branch L_ts")
    e("s_endpgm")

    e.label("L_final")
    e(f"s_lshl_b32 s66, {sG}, 1")
    e(f"s_add_u32 s66, s66, {sJ}")
    e("s_sub_u32 s66, s66, 14")
    e("s_cmp_ge_u32 s66, 14")
    e("s_cbranch_scc1 L_fin_exit")
    e("s_lshr_b32 s74, s66, 1")
    e("s_and_b32 s73, s66, 1")
    e("s_mul_i32 s66, s73, 896")
    e("s_add_u32 s52, s24, s66")
    e("s_addc_u32 s53, s25, 0")
    e("s_movk_i32 s54, 896")
    e("s_mov_b32 s55, 0x00020000")
    e("s_mov_b32 s60, s16")
    e("s_mov_b32 s61, s17")
    e("s_movk_i32 s62, 896")
    e("s_mov_b32 s63, 0x00020000")
    e("s_mov_b32 s56, s18")
    e("s_mov_b32 s57, s19")
    e("s_movk_i32 s58, 1792")
    e("s_mov_b32 s59, 0x00020000")
    e(f"v_lshlrev_b32 v4, 4, v{vLANE}")
    e(f"buffer_load_dwordx4 {vr(vST,4)}, v4, {SGW}, 0 offen")
    e(f"buffer_load_dwordx4 {vr(vST+4,4)}, v4, {SX}, 0 offen")
    e(f"v_mov_b32 v6, {XM}")
    e("ds_read2_b32 v[14:15], v6 offset0:1 offset1:2")
    e(f"v_lshlrev_b32 v5, 5, v{vLANE}")
    e("s_waitcnt vmcnt(0) lgkmcnt(0)")
    e("v_mov_b32 v7, 0")
    for k in range(4):
        e(f"v_lshlrev_b32 v8, 16, v{vST+k}")
        e(f"v_lshlrev_b32 v9, 16, v{vST+4+k}")
        e(f"v_and_b32 v10, 0xffff0000, v{vST+k}")
        e(f"v_and_b32 v11, 0xffff0000, v{vST+4+k}")
        e("v_mul_f32 v8, v8, v9")
        e("v_mul_f32 v10, v10, v11")
        e("v_cvt_pk_bf16_f32 v8, v8, v10")
        e("v_lshlrev_b32 v9, 16, v8")
        e("v_and_b32 v8, 0xffff0000, v8")
        e("v_add_f32 v7, v7, v9")
        e("v_add_f32 v7, v7, v8")
    e(f"v_lshlrev_b32 v8, 2, v{vLANE}")
    for m_ in (1, 2, 4, 8, 16, 32):
        e(f"v_xor_b32 v9, {m_*4}, v8")
        e("ds_bpermute_b32 v10, v9, v7")
        e("s_waitcnt lgkmcnt(0)")
        e("v_add_f32 v7, v7, v10")
    e("v_cvt_pk_bf16_f32 v7, v7, v7")
    e("v_lshlrev_b32 v7, 16, v7")
    e(f"v_mul_f32 v8, {f2u(-1.4426950408889634)}, v7")
    e("v_exp_f32 v8, v8")
    e("s_nop 0")
    e("v_add_f32 v8, 1.0, v8")
    e("v_rcp_f32 v8, v8")
    e("s_nop 0")
    e("v_cvt_pk_bf16_f32 v8, v8, v8")
    e("v_lshlrev_b32 v30, 16, v8")
    e("v_sub_f32 v9, 1.0, v30")
    e("v_cvt_pk_bf16_f32 v9, v9, v9")
    e("v_lshlrev_b32 v31, 16, v9")
    e(f"s_mov_b32 {sSPIN}, 0")
    e.label("L_fflag")
    e(f"buffer_load_dwordx4 {vr(vST,4)}, v5, {SWS}, 0 offen offset:{WS_XT} sc1" if WS_XT < 4096 else f"s_movk_i32 s66, {WS_XT}")
    e(f"buffer_load_dwordx4 {vr(vST,4)}, v5, {SWS}, s66 offen sc1")
    e(f"buffer_load_dwordx4 {vr(vST+4,4)}, v5, {SWS}, s66 offen offset:16 sc1")
    e("s_waitcnt vmcnt(0)")
    e(f"v_xor_b32 v6, v{vST+1}, v14")
    e(f"v_xor_b32 v7, v{vST+3}, v14")
    e(f"v_xor_b32 v8, v{vST+5}, v14")
    e(f"v_xor_b32 v9, v{vST+7}, v14")
    e("v_or_b32 v6, v6, v7")
    e("v_or3_b32 v6, v6, v8, v9")
    e("v_cmp_ne_u32 vcc, 0, v6")
    e("s_cmp_eq_u64 vcc, 0")
    e("s_cbranch_scc1 L_fflag_ok")
    e(f"s_add_u32 {sSPIN}, {sSPIN}, 1")
    e(f"s_cmp_lt_u32 {sSPIN}, {SPIN_CAP}")
    e("s_cbranch_scc1 L_fflag")
    e.label("L_fflag_ok")
    e(f"v_lshlrev_b32 v4, 9, v{vGq}")
    e(f"v_lshl_add_u32 v4, v{vN}, 2, v4")
    e("s_lshl_b32 s66, s74, 14")
    e("s_lshl_b32 s67, s73, 8")
    e("s_add_u32 s66, s66, s67")
    e(f"s_lshl_b32 s67, {sWAVE}, 6")
    e("s_add_u32 s66, s66, s67")
    e(f"s_add_u32 s66, s66, {WS_YS}")
    e("s_mul_i32 s68, s73, 896")
    e("s_lshl_b32 s67, s74, 7")
    e("s_add_u32 s68, s68, s67")
    e(f"s_lshl_b32 s67, {sWAVE}, 5")
    e("s_add_u32 s68, s68, s67")
    e(f"v_lshlrev_b32 v5, 1, v{vN}")
    e(f"v_lshlrev_b32 v9, 2, v{vLANE}")
    e("v_xor_b32 v10, 64, v9")
    e("v_xor_b32 v12, 128, v9")
    e(f"v_cmp_gt_u32 s[62:63], 16, v{vLANE}")
    e(f"s_mov_b32 {sMISS}, 0xff")
    e(f"s_mov_b32 {sSPIN}, 0")
    e.label("L_h2poll")
    for i in range(8):
        e(f"s_bitcmp1_b32 {sMISS}, {i}")
        e(f"s_cbranch_scc0 L_h2skip{i}")
        e(f"s_add_u32 s67, s66, {i*2048}")
        e(f"buffer_load_dword v{vS+i}, v4, {SWS}, s67 offen sc1")
        e.label(f"L_h2skip{i}")
    e("s_waitcnt vmcnt(0)")
    for i in range(8):
        e(f"s_bitcmp1_b32 {sMISS}, {i}")
        e(f"s_cbranch_scc0 L_h2chk{i}")
        e(f"v_cmp_eq_u32 vcc, -1, v{vS+i}")
        e(f"s_cmp_eq_u64 vcc, 0")
        e(f"s_cbranch_scc0 L_h2chk{i}")
        e(f"s_bitset0_b32 {sMISS}, {i}")
        e.label(f"L_h2chk{i}")
    e(f"s_cmp_eq_u32 {sMISS}, 0")
    e("s_cbranch_scc1 L_h2done")
    e(f"s_add_u32 {sSPIN}, {sSPIN}, 1")
    e(f"s_cmp_lt_u32 {sSPIN}, {SPIN_CAP}")
    e("s_cbranch_scc1 L_h2poll")
    e.label("L_h2done")
    stamp(10)
    e(f"v_add_f32 v8, v{vS}, v{vS+1}")
    e(f"v_add_f32 v7, v{vS+2}, v{vS+3}")
    e(f"v_add_f32 v13, v{vS+4}, v{vS+5}")
    e(f"v_add_f32 v11, v{vS+6}, v{vS+7}")
    e("v_add_f32 v8, v8, v7")
    e("v_add_f32 v13, v13, v11")
    e("v_mul_f32 v8, v8, v30")
    e("v_fmac_f32 v8, v13, v31")
    e("ds_bpermute_b32 v11, v10, v8")
    e("s_waitcnt lgkmcnt(0)")
    e("v_add_f32 v8, v8, v11")
    e("ds_bpermute_b32 v11, v12, v8")
    e("s_waitcnt lgkmcnt(0)")
    e("v_add_f32 v8, v8, v11")
    e("v_cvt_pk_bf16_f32 v8, v8, v8")
    e("s_mov_b64 exec, s[62:63]")
    e(f"buffer_store_short v8, v5, {SOUT}, s68 offen")
    e("s_or_b32 s66, s73, s74")
    e(f"s_or_b32 s66, s66, {sWAVE}")
    e("s_cmp_lg_u32 s66, 0")
    e("s_cbranch_scc1 L_nobump")
    e("v_add_u32 v15, 1, v15")
    e("v_mov_b32 v5, 0")
    e(f"buffer_store_dword v15, v5, {SWS}, 0 offen")
    e.label("L_nobump")
    stamp(11)
    if ts:
        e("s_mov_b64 exec, -1")
        e("s_branch L_ts")
    e.label("L_fin_exit")
    if ts:
        e("s_branch L_ts")
    e("s_endpgm")

    e.label("L_helper")
    e.q = []
    e("s_setprio 3")
    e(f"v_lshrrev_b32 v4, 2, v{vLANE}")
    e(f"v_and_b32 v5, 3, v{vLANE}")
    e(f"v_lshrrev_b32 v6, 5, v{vLANE}")
    e("v_lshlrev_b32 v6, 1, v6")
    e("v_xor_b32 v5, v5, v6")
    e("v_lshlrev_b32 v5, 4, v5")
    e(f"v_lshl_add_u32 v{vW}, v4, 13, v5")
    e(f"s_lshl_b32 s67, {sH}, 10")
    e(f"s_lshl_b32 s68, {sJ}, 6")
    e("s_add_u32 s67, s67, s68")
    e(f"v_and_b32 v4, 1, v{vN}")
    e("s_movk_i32 s66, 896")
    e("v_mul_lo_u32 v4, v4, s66")
    e(f"v_lshl_add_u32 v4, v{vGq}, 4, v4")
    e("v_mov_b32 v7, 0")
    e(f"v_mov_b32 v8, {XM}")
    e("v_mov_b32 v9, 0")
    e("ds_write_b32 v8, v9 offset:12")
    e(f"v_lshlrev_b32 v5, 4, v{vLANE}")
    e(f"s_lshl_b32 s68, {sG}, 1")
    e(f"s_add_u32 s68, s68, {sB}")
    e("s_lshl_b32 s68, s68, 3")
    e(f"s_add_u32 s68, s68, {sS}")
    e("s_lshl_b32 s68, s68, 12")
    e(f"s_add_u32 s70, s68, {WS_OA}")
    e(f"s_add_u32 s68, s68, {WS_OB}")
    e(f"s_lshl_b32 s69, {sG}, 1")
    e(f"s_add_u32 s69, s69, {sHH}")
    e("s_lshl_b32 s69, s69, 9")
    e(f"s_lshl_b32 s71, {sC7}, 14")
    e("s_add_u32 s69, s69, s71")
    e(f"s_add_u32 s69, s69, {WS_YS}")
    e(f"s_cmp_lt_u32 {sJ}, 14")
    e("s_cselect_b32 s69, s69, 0x40000000")
    e("v_mov_b32 v8, -1")
    e("v_mov_b32 v9, -1")
    e("v_mov_b32 v10, -1")
    e("v_mov_b32 v11, -1")
    e(f"v_cmp_gt_u32 s[62:63], 32, v{vLANE}")
    e("s_waitcnt lgkmcnt(0)")
    stamp(1)
    e("s_mov_b32 s36, s12")
    e("s_mov_b32 s37, s13")
    e("s_mov_b32 s38, 3670016")
    e("s_mov_b32 s39, 0x00020000")
    e(f"s_mov_b32 m0, {AUX}")
    e("s_mov_b32 s44, s22")
    e("s_mov_b32 s45, s23")
    e(f"s_mov_b32 s46, {WS_SIZE}")
    e("s_mov_b32 s47, 0x00020000")
    for i in range(28 if b0 != 2 else 0):
        e.vm(f"buffer_load_dwordx4 v{vW}, {SWQ}, s67 offen{NT} lds", "WQ")
        if i < 27:
            e("s_add_u32 m0, m0, 1024")
            e(f"s_add_u32 s67, s67, {16*8192}")
    if b0 == 1:
        e("s_barrier")
    e.vm(f"buffer_load_dword v26, v7, {SWS}, 0 offen", "EP")
    e("s_mov_b32 s52, s24")
    e("s_mov_b32 s53, s25")
    e("s_movk_i32 s54, 1792")
    e("s_mov_b32 s55, 0x00020000")
    XF = 128
    for t in range(14):
        e.vm(f"buffer_load_dwordx4 {vr(XF+4*t,4)}, v4, {SX}, 0 offen offset:{t*64}", "X")
    for q in range(4):
        e.vm(f"buffer_store_dwordx4 v[8:11], v5, {SWS}, s68 offen offset:{q*1024} sc1", "CL")
    for q in range(4):
        e.vm(f"buffer_store_dwordx4 v[8:11], v5, {SWS}, s70 offen offset:{q*1024} sc1", "CL")
    e("s_mov_b64 exec, s[62:63]")
    e.vm(f"buffer_store_dwordx4 v[8:11], v5, {SWS}, s69 offen sc1", "CL")
    e("s_mov_b64 exec, -1")
    stamp(2)
    e(f"v_bfe_u32 v12, v{vLANE}, 2, 2")
    e(f"v_lshl_add_u32 v12, v{vGq}, 3, v12")
    e(f"v_and_b32 v13, 3, v{vLANE}")
    e("v_lshlrev_b32 v13, 3, v13")
    e("v_lshl_add_u32 v13, v12, 6, v13")
    e(f"v_add_u32 v13, {AUX}, v13")
    e(f"v_and_b32 v14, 1, v{vGq}")
    for ct in range(2):
        e(f"v_xor_b32 v6, {ct}, v14")
        e(f"v_lshl_add_u32 v{16+ct}, v6, 5, v13")
    e(f"v_and_b32 v6, 1, v{vN}")
    e("v_lshlrev_b32 v6, 11, v6")
    e(f"v_lshrrev_b32 v7, 1, v{vN}")
    e("v_lshl_add_u32 v6, v7, 6, v6")
    e(f"v_lshl_add_u32 v6, v{vGq}, 4, v6")
    e("v_cmp_eq_u32 s[56:57], 1, v7")
    e(f"v_cmp_gt_u32 s[58:59], 4, v{vN}")
    e(f"s_lshl_b32 s66, {sG}, 12")
    e(f"s_lshl_b32 s67, {sJ}, 7")
    e("s_add_u32 s66, s66, s67")
    e(f"s_add_u32 s66, s66, {WS_QP}")
    e("s_getreg_b32 s72, hwreg(HW_REG_XCC_ID)")
    e("s_and_b32 s72, s72, 15")
    e(f"v_lshlrev_b32 v24, 4, v{vLANE}")
    e(f"s_lshl_b32 s68, {sG}, 12")
    e(f"s_lshl_b32 s67, {sB}, 11")
    e("s_add_u32 s68, s68, s67")
    e(f"s_add_u32 s68, s68, {WS_QP}")
    e(f"s_lshl_b32 s67, {sG}, 4")
    e(f"s_add_u32 s67, s67, {sJ}")
    e("s_lshl_b32 s67, s67, 3")
    e(f"s_add_u32 s67, s67, {WS_XT}")
    e("v_mov_b32 v28, s72")
    e("v_mov_b32 v7, 0")
    e(f"v_cmp_eq_u32 s[62:63], 0, v{vLANE}")
    e(f"v_lshlrev_b32 v25, 3, v{vLANE}")
    e(f"v_add_u32 v25, 0, v25")
    e.wait_tag("WQ", "X", "EP")
    if b0 == 2:
        e("s_barrier")
    stamp(3)
    e("s_mov_b32 s69, 0x9E3779B1")
    e("v_mul_lo_u32 v27, v26, s69")
    e("v_add_u32 v27, 0x7F4A7C15, v27")
    e("v_mov_b32 v29, v27")
    WF = 32

    def qreads(t):
        for ct in range(2):
            d = WF + (t & 3) * 8 + ct * 4
            e(f"ds_read_b64_tr_b16 {vr(d,2)}, v{16+ct} offset:{t*2048}")
            e(f"ds_read_b64_tr_b16 {vr(d+2,2)}, v{16+ct} offset:{t*2048+256}")
    for t in range(3):
        qreads(t)
    for t in range(14):
        ahead = min(13, t + 2) - t
        e(f"s_waitcnt lgkmcnt({4*ahead})")
        for ct in range(2):
            d = WF + (t & 3) * 8 + ct * 4
            cc = "0" if t == 0 else vr(184 + 4 * ct, 4)
            e(f"v_mfma_f32_16x16x32_bf16 {vr(184+4*ct,4)}, {vr(d,4)}, {vr(XF+4*t,4)}, {cc}")
        if t + 3 < 14:
            qreads(t + 3)
    e("s_waitcnt vmcnt(0)")
    e.q = []
    e("s_nop 7")
    e("v_cvt_pk_bf16_f32 v32, v184, v185")
    e("v_cvt_pk_bf16_f32 v33, v186, v187")
    e("v_cvt_pk_bf16_f32 v34, v188, v189")
    e("v_cvt_pk_bf16_f32 v35, v190, v191")
    e("v_mov_b32 v45, v27")
    e("v_mov_b32 v47, v27")
    e("v_cndmask_b32 v44, v32, v34, s[56:57]")
    e("v_cndmask_b32 v46, v33, v35, s[56:57]")
    e(f"s_add_u32 s69, s66, {WS_QA - WS_QP}")
    e(f"s_add_u32 s70, s67, {WS_XA - WS_XT}")
    e("s_mov_b64 exec, s[58:59]")
    e(f"buffer_store_dwordx4 v[44:47], v6, {SWS}, s69 offen")
    e("s_mov_b64 exec, s[62:63]")
    e(f"buffer_store_dwordx2 v[28:29], v7, {SWS}, s70 offen")
    e("s_mov_b64 exec, -1")
    stamp(6)
    e(f"s_lshl_b32 s74, {sG}, 7")
    e(f"s_add_u32 s74, s74, {WS_XT}")
    e(f"v_cmp_gt_u32 s[60:61], 16, v{vLANE}")
    e(f"s_mov_b32 {sSPIN}, 0")
    e("s_mov_b32 s73, 0")
    e.label("L_qpoll")
    e(f"s_cmp_lt_u32 {sSPIN}, {qa_rounds}")
    e(f"s_cselect_b32 s69, {WS_QA - WS_QP}, 0")
    e(f"s_cselect_b32 s70, {WS_XA - WS_XT}, 0")
    e("s_add_u32 s69, s69, s68")
    e("s_add_u32 s70, s70, s74")
    e(f"buffer_load_dwordx4 v[64:67], v24, {SWS}, s69 offen sc1")
    e(f"buffer_load_dwordx4 v[68:71], v24, {SWS}, s69 offen offset:1024 sc1")
    e("s_mov_b64 exec, s[60:61]")
    e(f"buffer_load_dwordx2 v[30:31], v25, {SWS}, s70 offen sc1")
    e("s_mov_b64 exec, -1")
    e("v_mov_b32 v73, 0")
    e("s_cmp_lg_u32 s73, 0")
    e("s_cbranch_scc1 L_qw0")
    e("s_mov_b32 s73, 1")
    e("s_mov_b64 exec, s[58:59]")
    e(f"buffer_store_dwordx4 v[44:47], v6, {SWS}, s66 offen sc1")
    e("s_mov_b64 exec, s[62:63]")
    e(f"buffer_store_dwordx2 v[28:29], v7, {SWS}, s67 offen sc1")
    e("s_mov_b64 exec, -1")
    e("s_waitcnt vmcnt(2)")
    e("s_branch L_qw1")
    e.label("L_qw0")
    e("s_waitcnt vmcnt(0)")
    e.label("L_qw1")
    e("v_xor_b32 v72, v65, v27")
    e("s_mov_b64 exec, s[60:61]")
    e("v_xor_b32 v73, v31, v27")
    e("s_mov_b64 exec, -1")
    e("v_xor_b32 v74, v67, v27")
    e("v_or3_b32 v72, v72, v73, v74")
    e("v_xor_b32 v74, v69, v27")
    e("v_xor_b32 v75, v71, v27")
    e("v_or3_b32 v72, v72, v74, v75")
    if ts:
        for rr in range(3):
            e(f"s_cmp_eq_u32 {sSPIN}, {rr}")
            e(f"s_cbranch_scc0 L_rs{rr}")
            stamp(9 + rr)
            e.label(f"L_rs{rr}")
    e("v_cmp_ne_u32 vcc, 0, v72")
    e("s_cmp_eq_u64 vcc, 0")
    e("s_cbranch_scc1 L_qready")
    e(f"s_add_u32 {sSPIN}, {sSPIN}, 1")
    e(f"s_cmp_lt_u32 {sSPIN}, {SPIN_CAP}")
    e("s_cbranch_scc1 L_qpoll")
    e.label("L_qready")
    stamp(7)
    if ts:
        e(f"s_mov_b32 s84, {sSPIN}")
    e("v_mov_b32 v65, v66")
    e("v_mov_b32 v69, v70")
    e(f"v_lshlrev_b32 v9, 3, v{vLANE}")
    e(f"v_add_u32 v9, {QS}, v9")
    e("ds_write_b64 v9, v[64:65]")
    e("ds_write_b64 v9, v[68:69] offset:512")
    e("s_mov_b64 exec, s[60:61]")
    e("v_cmp_eq_u32 vcc, s72, v30")
    e("s_mov_b64 exec, -1")
    e("s_nop 1")
    e("v_mov_b32 v8, vcc_lo")
    e("v_mov_b32 v9, v27")
    e("v_mov_b32 v10, v26")
    e("v_mov_b32 v11, 1")
    e(f"v_mov_b32 v12, {XM}")
    e("s_waitcnt lgkmcnt(0)")
    e("ds_write_b128 v12, v[8:11]")
    e("s_waitcnt lgkmcnt(0)")
    stamp(8)
    e("s_cmp_lg_u32 s73, 0")
    e("s_cbranch_scc1 L_qBd")
    e("s_mov_b64 exec, s[58:59]")
    e(f"buffer_store_dwordx4 v[44:47], v6, {SWS}, s66 offen sc1")
    e("s_mov_b64 exec, s[62:63]")
    e(f"buffer_store_dwordx2 v[28:29], v7, {SWS}, s67 offen sc1")
    e("s_mov_b64 exec, -1")
    e.label("L_qBd")
    e("s_barrier")
    e("s_barrier")
    if ts:
        e("s_branch L_ts")
    e("s_endpgm")

    if ts:
        e.label("L_ts")
        e("s_waitcnt lgkmcnt(0)")
        e("s_mov_b32 s44, s22")
        e("s_mov_b32 s45, s23")
        e(f"s_mov_b32 s46, {WS_SIZE}")
        e("s_mov_b32 s47, 0x00020000")
        e("s_mul_i32 s66, s2, 5")
        e("s_add_u32 s66, s66, s3")
        e("s_lshl_b32 s66, s66, 6")
        e(f"s_add_u32 s66, s66, {WS_TS}")
        e("v_mov_b32 v4, s66")
        e(f"v_cmp_eq_u32 vcc, 0, v{vLANE}")
        e("s_and_saveexec_b64 s[68:69], vcc")
        for i in range(12):
            e(f"v_mov_b32 v5, s{76+2*i}")
            e(f"buffer_store_dword v5, v4, {SWS}, 0 offen offset:{4*i}")
        e("s_endpgm")
    e.label("L_end")
    e("s_endpgm")
    A('.section .rodata,"a"')
    A(".p2align 6")
    A(f".amdhsa_kernel {NAME}_kernel")
    A(f"  .amdhsa_next_free_vgpr {NVGPR}")
    A("  .amdhsa_next_free_sgpr 102")
    A(f"  .amdhsa_accum_offset {NVGPR}")
    A("  .amdhsa_group_segment_fixed_size 0")
    A("  .amdhsa_kernarg_size 112")
    A("  .amdhsa_user_sgpr_count 2")
    A("  .amdhsa_user_sgpr_kernarg_segment_ptr 1")
    A("  .amdhsa_system_sgpr_workgroup_id_x 1")
    A(".end_amdhsa_kernel")
    return "\n".join(e.o) + "\n"


if __name__ == "__main__":
    out = sys.argv[1] if len(sys.argv) > 1 else "k2.s"
    kw = {}
    for a in sys.argv[2:]:
        if a == "ts":
            kw["ts"] = True
        elif "=" in a:
            k, v = a.split("=")
            kw[k] = int(v)
    open(out, "w").write(gen(**kw))
```

```python
import sys, struct

NAME = "gated_mix__gqa_block_cached__gqa_block_cached__decode"
HDR = open("cdna_kernels/%s.s.ref" % NAME).read().split("; Override launch geometry")[0]

WS_EP = 0x0
WS_XT = 0x1000
WS_QP = 0x40000
WS_QA = 0x60000
WS_XA = 0x2000
WS_OB = 0x80000
WS_OA = 0x180000
WS_YS = 0x280000
WS_TS = 0x2A0000
WS_SIZE = 0x2C0000
RING = 32768
AUX = 131072
QS = AUX + 28672
MX = QS + 1024
XM = MX + 64
LX = MX + 128
OSB = LX + 128
OPART = AUX
LDS_SIZE = 163840
SPIN_CAP = 40000


def f2u(f):
    return struct.unpack("<I", struct.pack("<f", f))[0]


class E:
    def __init__(self):
        self.o = []
        self.q = []

    def __call__(self, s):
        self.o.append("  " + s)

    def label(self, l):
        self.o.append(l + ":")

    def vm(self, s, tag):
        self.o.append("  " + s)
        self.q.append(tag)

    def wait_tag(self, *tags):
        idx = max((i for i, t in enumerate(self.q) if t in tags), default=-1)
        if idx < 0:
            return
        n = len(self.q) - 1 - idx
        self.wait_n(n)

    def wait_n(self, n):
        if n >= len(self.q):
            return
        self.o.append(f"  s_waitcnt vmcnt({min(n, 63)})")
        self.q = self.q[len(self.q) - n:] if n else []


def vr(a, n):
    return f"v[{a}:{a+n-1}]"


def gen(ts=False, stag=5, nt=True, apath=True, ni=10, quantum=2, qa_rounds=2, deep_pre=1, deep_from=99, ni_deep=32, b0=1, mapping=0, nreg=3):
    e = E()
    NT = " nt" if nt else ""
    sWAVE = "s3"
    sG, sJ, sBR, sH, sB, sS = "s4", "s5", "s6", "s7", "s26", "s27"
    SK, SV, SWQ, SWO, SWS, SDBG, SX, SOUT, SGW = ("s[28:31]", "s[32:35]", "s[36:39]", "s[40:43]", "s[44:47]",
                                                  "s[48:51]", "s[52:55]", "s[56:59]", "s[60:63]")
    sRING, sROT = "s64", "s65"
    sMISS, sSPIN, sC = "s70", "s71", "s72"
    sHH, sC7, sXM = "s73", "s74", "s75"
    vLANE, vN, vGq = 1, 2, 3
    vDMA = 12
    vKA = 16
    vVA = 20
    vW = 28
    vM, vL = 30, 31
    vST = 32
    vS = 64
    vQ = 128
    vWO = 160
    vR0, vR1 = 192, 224
    vR2 = vS + 32
    NVGPR = 256

    def stamp(i):
        if ts:
            e(f"s_memrealtime s[{76+2*i}:{77+2*i}]")

    A = e.o.append
    A(HDR.rstrip())
    A("; Override launch geometry by editing the next line (default: block=256,")
    A(f"; @launch grid=(256,1,1) block=(320,1,1) lds={LDS_SIZE}")
    A('.amdgcn_target "amdgcn-amd-amdhsa--gfx950"')
    A(".text")
    A(f".globl {NAME}_kernel")
    A(".p2align 8")
    A(f".type {NAME}_kernel,@function")
    A(f"{NAME}_kernel:")
    e("s_cmp_ge_u32 s2, 256")
    e("s_cbranch_scc1 L_end")
    e("s_and_b32 s66, s2, 7")
    e("s_lshr_b32 s67, s2, 3")
    if mapping == 0:
        e("s_lshr_b32 s6, s66, 2")
    else:
        e("s_lshr_b32 s6, s2, 7")
    e("s_mul_i32 s68, s6, 40")
    e("s_add_u32 s68, s68, 8")
    e("s_load_dwordx8 s[8:15], s[0:1], s68")
    e("s_load_dwordx8 s[16:23], s[0:1], 80")
    e("s_load_dwordx2 s[24:25], s[0:1], 0")
    stamp(0)
    if mapping == 0:
        e("s_and_b32 s69, s67, 1")
        e("s_lshl_b32 s4, s66, 1")
        e("s_add_u32 s4, s4, s69")
        e("s_lshr_b32 s5, s67, 1")
        e("s_and_b32 s7, s4, 7")
        e("s_lshr_b32 s26, s5, 3")
        e("s_and_b32 s27, s5, 7")
    else:
        e("s_lshr_b32 s4, s67, 1")
        e("s_and_b32 s26, s67, 1")
        e("s_lshl_b32 s5, s66, 1")
        e("s_add_u32 s5, s5, s26")
        e("s_and_b32 s7, s4, 7")
        e("s_add_u32 s27, s66, s4")
        e("s_and_b32 s27, s27, 7")
    e(f"v_lshrrev_b32 v4, 6, v0")
    e(f"v_and_b32 v{vLANE}, 63, v0")
    e("v_readfirstlane_b32 s3, v4")
    e(f"v_and_b32 v{vN}, 15, v{vLANE}")
    e(f"v_lshrrev_b32 v{vGq}, 4, v{vLANE}")
    e("s_and_b32 s73, s5, 1")
    e("s_lshr_b32 s74, s5, 1")
    e(f"v_lshrrev_b32 v4, 3, v{vLANE}")
    e(f"v_and_b32 v5, 7, v{vLANE}")
    e(f"v_lshrrev_b32 v6, 4, v{vLANE}")
    e("v_lshlrev_b32 v6, 1, v6")
    e("v_xor_b32 v5, v5, v6")
    e("v_lshlrev_b32 v5, 4, v5")
    e("s_cmp_eq_u32 s3, 4")
    e("s_cbranch_scc1 L_helper")

    e("s_movk_i32 s66, 896")
    e(f"v_mad_u32_u24 v{vW+1}, v4, s66, v5")
    e(f"v_lshrrev_b32 v4, 5, v{vLANE}")
    e(f"v_and_b32 v5, 31, v{vLANE}")
    for i in range(4):
        e(f"v_add_u32 v6, {2*i}, v4")
        e("v_lshlrev_b32 v6, 1, v6")
        e("v_xor_b32 v6, v6, v5")
        e("v_lshlrev_b32 v6, 4, v6")
        e(f"v_lshl_add_u32 v{vDMA+i}, v4, 9, v6")
    e(f"v_lshrrev_b32 v4, 2, v{vLANE}")
    e(f"v_and_b32 v5, 3, v{vLANE}")
    e(f"v_lshrrev_b32 v6, 5, v{vLANE}")
    e("v_lshlrev_b32 v6, 1, v6")
    e("v_xor_b32 v5, v5, v6")
    e("v_lshlrev_b32 v5, 4, v5")
    e(f"v_lshl_add_u32 v{vW}, v4, 13, v5")
    e(f"s_lshl_b32 s56, {sH}, 10")
    e(f"s_lshl_b32 s57, {sJ}, 6")
    e("s_add_u32 s56, s56, s57")
    e(f"s_mul_i32 s57, {sWAVE}, {7*16*8192}")
    e("s_add_u32 s56, s56, s57")
    e(f"s_mul_i32 s57, {sWAVE}, 7168")
    e(f"s_add_u32 s57, s57, {AUX}")
    e(f"s_lshl_b32 {sRING}, {sWAVE}, 15")
    e("s_lshl_b32 s66, s2, 2")
    e(f"s_add_u32 s66, s66, {sWAVE}")
    e(f"s_mul_i32 s66, s66, {stag}")
    e("s_and_b32 s66, s66, 31")
    e(f"s_lshl_b32 {sROT}, s66, 12")
    e(f"s_lshl_b32 s66, {sB}, 3")
    e(f"s_add_u32 s66, s66, {sH}")
    e("s_lshl_b32 s66, s66, 22")
    e(f"s_lshl_b32 s67, {sS}, 19")
    e("s_add_u32 s66, s66, s67")
    e(f"s_lshl_b32 s67, {sWAVE}, 17")
    e("s_add_u32 s66, s66, s67")
    e(f"s_lshl_b32 s68, {sH}, 1")
    e(f"s_add_u32 s68, s68, {sHH}")
    e("s_lshl_b32 s68, s68, 8")
    e(f"s_lshl_b32 s69, {sWAVE}, 6")
    e("s_add_u32 s68, s68, s69")
    e("s_mul_i32 s68, s68, 896")
    e(f"s_lshl_b32 s69, {sC7}, 7")
    e("s_add_u32 s68, s68, s69")
    e(f"s_cmp_lt_u32 {sJ}, 14")
    e("s_cselect_b32 s68, s68, 0x40000000")
    e("s_waitcnt lgkmcnt(0)")
    stamp(1)
    e("s_add_u32 s28, s8, s66")
    e("s_addc_u32 s29, s9, 0")
    e("s_mov_b32 s30, 0x20000")
    e("s_mov_b32 s31, 0x00020000")
    e("s_mov_b32 s40, s14")
    e("s_mov_b32 s41, s15")
    e("s_mov_b32 s42, 3670016")
    e("s_mov_b32 s43, 0x00020000")
    e("s_add_u32 s32, s10, s66")
    e("s_addc_u32 s33, s11, 0")
    e("s_mov_b32 s34, 0x20000")
    e("s_mov_b32 s35, 0x00020000")
    if b0 == 1:
        e("s_barrier")
    if b0 == 2:
        e("s_mov_b32 s36, s12")
        e("s_mov_b32 s37, s13")
        e("s_mov_b32 s38, 3670016")
        e("s_mov_b32 s39, 0x00020000")
        for i in range(7):
            e(f"s_add_u32 m0, s57, {i*1024}" if i else "s_mov_b32 m0, s57")
            e(f"s_add_u32 s58, s56, {i*16*8192}" if i else "s_mov_b32 s58, s56")
            e.vm(f"buffer_load_dwordx4 v{vW}, {SWQ}, s58 offen{NT} lds", "WQ")

    if nreg == 3:
        order = [3, 4, 5, 0, 1, 2] + list(range(6, 16))
        regt = {0: vR0, 1: vR1, 2: vR2}
        wo_pos = 2
        last_lds = 5
    else:
        order = [4, 3, 5, 6, 7, 0, 1, 2] + list(range(8, 16))
        regt = {0: vR0, 1: vR1, 2: vR2, 3: vWO, 4: vST}
        wo_pos = 4
        last_lds = 7
    ulist = [("W", 0, 0), ("W", 0, 1)]
    for t in range(16):
        ulist += [("K", t, 0), ("K", t, 1)]
    for t in order:
        ulist += [("V", t, 0), ("V", t, 1)]
    ilist = [(k, t, u, i) for (k, t, u) in ulist for i in range(4)]
    st = dict(next=0, inflight=[], free=[0, 1, 2], slot={}, landed=set())

    def emit_issue(item):
        kind, tile, u, i = item
        if kind == "W":
            ii = u * 4 + i
            e(f"s_add_u32 m0, {sRING}, {24576 + ii*1024}")
            e(f"s_add_u32 s70, s68, {ii*8*896}")
            e.vm(f"buffer_load_dwordx4 v{vW+1}, {SWO}, s70 offen{NT} lds", item)
            return
        tslot = st["slot"][(kind, tile)]
        srd = SK if kind == "K" else SV
        off = (2 * tile + u) * 4096
        so = "s75x" if off else sROT
        so = "s61" if off else sROT
        if i == 0:
            e(f"s_add_u32 m0, {sRING}, {tslot*8192 + u*4096}")
            if off:
                e(f"s_add_u32 s61, {sROT}, {off}")
                e("s_and_b32 s61, s61, 0x1ffff")
            else:
                e("s_nop 0")
        e.vm(f"buffer_load_dwordx4 v{vDMA+i}, {srd}, {so} offen offset:{i*1024}{NT} lds", item)

    def try_issue():
        while st["next"] < len(ilist):
            item = ilist[st["next"]]
            kind, tile, u, i = item
            lim = ni_deep if (kind == "V" and order.index(tile) >= deep_from) else ni
            if len(st["inflight"]) + quantum > lim:
                return
            if kind != "W" and u == 0 and i == 0:
                if not st["free"]:
                    return
                st["slot"][(kind, tile)] = st["free"].pop(0)
            for q_ in range(quantum):
                item = ilist[st["next"]]
                emit_issue(item)
                st["inflight"].append(item)
                st["next"] += 1

    def land(*units):
        for un in units:
            last = un + (3,)
            while last not in st["landed"]:
                if not st["inflight"]:
                    try_issue()
                    assert st["inflight"], ("stuck", un)
                grp = st["inflight"][:quantum]
                e.wait_tag(grp[-1])
                for g_ in grp:
                    st["landed"].add(g_)
                st["inflight"] = st["inflight"][quantum:]
                try_issue()

    def release(kind, tile):
        st["free"].append(st["slot"][(kind, tile)])
        try_issue()

    try_issue()
    stamp(2)
    e(f"v_and_b32 v4, 7, v{vN}")
    e("v_lshlrev_b32 v4, 1, v4")
    e(f"v_lshlrev_b32 v5, 9, v{vN}")
    e(f"v_add_u32 v5, {sRING}, v5")
    for tt in range(4):
        e(f"v_add_u32 v6, {4*tt}, v{vGq}")
        e("v_xor_b32 v6, v6, v4")
        e(f"v_lshl_add_u32 v{vKA+tt}, v6, 4, v5")
    e(f"v_lshrrev_b32 v4, 2, v{vLANE}")
    e(f"v_and_b32 v5, 3, v{vLANE}")
    e("v_lshlrev_b32 v5, 3, v5")
    e(f"v_lshl_add_u32 v5, v4, 9, v5")
    e(f"v_add_u32 v5, {sRING}, v5")
    e("v_and_b32 v4, 7, v4")
    for d in range(8):
        e(f"v_xor_b32 v6, {d}, v4")
        e(f"v_lshl_add_u32 v{vVA+d}, v6, 5, v5")
    e("s_mov_b32 s44, s22")
    e("s_mov_b32 s45, s23")
    e(f"s_mov_b32 s46, {WS_SIZE}")
    e("s_mov_b32 s47, 0x00020000")
    e(f"s_mov_b32 {sC}, {f2u(1.4426950408889634/16.0)}")
    e(f"v_mov_b32 v{vM}, 0xff800000")
    e(f"v_mov_b32 v{vL}, 0")

    if b0 == 2:
        e.wait_tag("WQ")
        e("s_barrier")

    def kread(dst, tslot):
        for t in range(8):
            e(f"ds_read_b128 {vr(dst+4*t,4)}, v{vKA+(t&3)} offset:{tslot*8192 + (t>>2)*256}")

    for tile, R in sorted(regt.items()):
        land(("K", tile, 0), ("K", tile, 1))
        kread(R, st["slot"][("K", tile)])
        e("s_waitcnt lgkmcnt(0)")
        release("K", tile)
    land(("W", 0, 0), ("W", 0, 1), ("K", last_lds, 0), ("K", last_lds, 1)) if deep_pre else land(("W", 0, 0), ("W", 0, 1))
    stamp(3)
    e("s_barrier")
    stamp(4)
    e(f"v_and_b32 v4, 1, v{vN}")
    e("v_lshlrev_b32 v4, 9, v4")
    e(f"v_lshl_add_u32 v4, v{vGq}, 4, v4")
    e(f"v_add_u32 v4, {QS}, v4")
    for t in range(8):
        e(f"ds_read_b128 {vr(vQ+4*t,4)}, v4 offset:{t*64}")

    def runmax(p):
        e(f"v_max3_f32 v{vM}, v{vM}, v{vS+4*p}, v{vS+4*p+1}")
        e(f"v_max3_f32 v{vM}, v{vM}, v{vS+4*p+2}, v{vS+4*p+3}")

    def kmfma(p, src, counted):
        for t in range(8):
            if counted:
                e(f"s_waitcnt lgkmcnt({7-t})")
            cc = "0" if t == 0 else vr(vS + 4 * p, 4)
            e(f"v_mfma_f32_16x16x32_bf16 {vr(vS+4*p,4)}, {vr(src+4*t,4)}, {vr(vQ+4*t,4)}, {cc}")

    for p, tile in enumerate(order):
        if tile in regt:
            if p == 0:
                e("s_waitcnt lgkmcnt(0)")
            kmfma(p, regt[tile], False)
            if p > 0:
                runmax(p - 1)
        else:
            land(("K", tile, 0), ("K", tile, 1))
            kread(vST, st["slot"][("K", tile)])
            if p > 0:
                runmax(p - 1)
            kmfma(p, vST, True)
            release("K", tile)
        if p == wo_pos:
            e(f"v_bfe_u32 v5, v{vLANE}, 2, 2")
            e(f"v_lshl_add_u32 v5, v{vGq}, 3, v5")
            e(f"v_and_b32 v6, 3, v{vLANE}")
            e("v_lshlrev_b32 v6, 3, v6")
            e("v_lshl_add_u32 v6, v5, 7, v6")
            e("v_bfe_u32 v7, v5, 1, 2")
            e(f"v_xor_b32 v8, {sWAVE}, v7")
            e("v_lshl_add_u32 v8, v8, 5, v6")
            e("v_add_u32 v7, 2, v7")
            e("v_and_b32 v7, 3, v7")
            e(f"v_xor_b32 v9, {sWAVE}, v7")
            e("v_lshl_add_u32 v9, v9, 5, v6")
            e("v_add_u32 v9, 512, v9")
            e("v_add_u32 v10, 0x10000, v8")
            e("v_add_u32 v11, 0x10000, v9")
            for t in range(8):
                off = (t >> 1) * RING + 24576 + (t & 1) * 32 * 128
                a0, a1 = (8, 9) if off <= 65535 else (10, 11)
                off &= 0xFFFF
                e(f"ds_read_b64_tr_b16 {vr(vWO+4*t,2)}, v{a0} offset:{off}")
                e(f"ds_read_b64_tr_b16 {vr(vWO+4*t+2,2)}, v{a1} offset:{off}")
            e("s_waitcnt lgkmcnt(0)")
            e("s_barrier")
            st["free"].append(3)
            try_issue()
            stamp(5)
    stamp(6)
    e("s_nop 7")
    e("s_nop 1")
    runmax(15)
    e(f"v_lshlrev_b32 v4, 2, v{vLANE}")
    for m_ in (16, 32):
        e(f"v_xor_b32 v5, {m_*4}, v4")
        e(f"ds_bpermute_b32 v6, v5, v{vM}")
        e("s_waitcnt lgkmcnt(0)")
        e(f"v_max_f32 v{vM}, v{vM}, v6")
    e(f"v_mul_f32 v{vM}, {sC}, v{vM}")
    e(f"v_and_b32 v5, 1, v{vN}")
    e("v_lshlrev_b32 v5, 4, v5")
    e(f"s_lshl_b32 s66, {sWAVE}, 2")
    e(f"s_add_u32 s66, s66, {MX}")
    e("v_add_u32 v6, s66, v5")
    e(f"ds_write_b32 v6, v{vM}")

    def pcalc(p):
        for r_ in range(4):
            e(f"v_fma_f32 v{vS+4*p+r_}, v{vS+4*p+r_}, {sC}, -v{vM}")
        for r_ in range(4):
            e(f"v_exp_f32 v{vS+4*p+r_}, v{vS+4*p+r_}")
        e("s_nop 0")
        e(f"v_cvt_pk_bf16_f32 v{vQ+2*p}, v{vS+4*p}, v{vS+4*p+1}")
        e(f"v_cvt_pk_bf16_f32 v{vQ+2*p+1}, v{vS+4*p+2}, v{vS+4*p+3}")
        e(f"v_add_f32 v4, v{vS+4*p}, v{vS+4*p+1}")
        e(f"v_add_f32 v5, v{vS+4*p+2}, v{vS+4*p+3}")
        e(f"v_add_f32 v{vL}, v{vL}, v4")
        e(f"v_add_f32 v{vL}, v{vL}, v5")

    stamp(7)
    vO = vR0
    for p, tile in enumerate(order):
        land(("V", tile, 0), ("V", tile, 1))
        ts_ = st["slot"][("V", tile)]
        for d in range(16):
            e(f"ds_read_b64_tr_b16 {vr(vST+2*d,2)}, v{vVA+(d&7)} offset:{ts_*8192 + (d>>3)*256}")
        if p < 8:
            pcalc(2 * p)
            pcalc(2 * p + 1)
        else:
            e("s_nop 0")
        for d in range(16):
            if d % 2 == 0:
                e(f"s_waitcnt lgkmcnt({14-d})")
            cc = "0" if p == 0 else vr(vO + 4 * d, 4)
            e(f"v_mfma_f32_16x16x16_bf16 {vr(vO+4*d,4)}, {vr(vST+2*d,2)}, {vr(vQ+2*p,2)}, {cc}")
        release("V", tile)
        if p == 8:
            e(f"v_and_b32 v5, 1, v{vN}")
            e("v_lshlrev_b32 v5, 6, v5")
            e(f"v_lshl_add_u32 v5, v{vGq}, 2, v5")
            e(f"s_lshl_b32 s66, {sWAVE}, 4")
            e(f"s_add_u32 s66, s66, {LX}")
            e("v_add_u32 v5, s66, v5")
            e(f"ds_write_b32 v5, v{vL}")
            e(f"v_lshlrev_b32 v8, 10, v{vN}")
            e(f"v_lshl_add_u32 v8, v{vGq}, 4, v8")
            e(f"s_lshl_b32 s66, {sWAVE}, 11")
            e(f"s_add_u32 s66, s66, {OPART}")
            e("v_add_u32 v8, s66, v8")
            e("v_lshrrev_b32 v9, 7, v0")
            e("v_and_b32 v10, 127, v0")
            e("v_lshlrev_b32 v11, 10, v9")
            e("v_lshl_add_u32 v11, v10, 3, v11")
            e(f"v_add_u32 v11, {OPART}, v11")
            e("v_lshlrev_b32 v28, 4, v9")
            e(f"v_add_u32 v28, {MX}, v28")
            e("v_lshlrev_b32 v29, 6, v9")
            e(f"v_add_u32 v29, {LX}, v29")
            e(f"s_lshl_b32 s68, {sG}, 1")
            e(f"s_add_u32 s68, s68, {sB}")
            e("s_lshl_b32 s68, s68, 3")
            e(f"s_add_u32 s68, s68, {sS}")
            e("s_lshl_b32 s68, s68, 12")
            e(f"s_add_u32 s69, s68, {WS_OA}")
            e(f"s_add_u32 s68, s68, {WS_OB}")
            e("v_lshlrev_b32 v7, 4, v0")
            e(f"v_cmp_gt_u32 s[62:63], 2, v{vN}")
            e(f"v_mov_b32 v6, {XM}")
            e("ds_read_b32 v6, v6")
            e("s_waitcnt lgkmcnt(0)")
            e(f"v_readfirstlane_b32 {sXM}, v6")
    stamp(8)
    e("s_mov_b64 s[66:67], exec")
    e("s_mov_b64 exec, s[62:63]")
    e("s_nop 5")
    for d in range(16):
        e(f"ds_write_b128 v8, {vr(vO+4*d,4)} offset:{d*64}")
    e("s_mov_b64 exec, s[66:67]")
    e("s_waitcnt lgkmcnt(0)")
    e("s_barrier")
    for w in range(4):
        e(f"ds_read_b64 {vr(vST+2*w,2)}, v11 offset:{w*2048}")
    e(f"ds_read_b128 {vr(vST+8,4)}, v28")
    for w in range(4):
        e(f"ds_read_b128 {vr(vST+12+4*w,4)}, v29 offset:{w*16}")
    e("v_mov_b32 v16, 0xfffffffe")
    e("s_waitcnt lgkmcnt(4)")
    m0 = vST + 8
    e(f"v_max3_f32 v14, v{m0}, v{m0+1}, v{m0+2}")
    e(f"v_max_f32 v14, v14, v{m0+3}")
    for w in range(4):
        e(f"v_sub_f32 v{m0+w}, v{m0+w}, v14")
    for w in range(4):
        e(f"v_exp_f32 v{m0+w}, v{m0+w}")
    e("s_waitcnt lgkmcnt(0)")
    e(f"v_mul_f32 v12, v{m0}, v{vST}")
    e(f"v_mul_f32 v13, v{m0}, v{vST+1}")
    for w in range(1, 4):
        e(f"v_fmac_f32 v12, v{m0+w}, v{vST+2*w}")
        e(f"v_fmac_f32 v13, v{m0+w}, v{vST+2*w+1}")
    for w in range(4):
        l0 = vST + 12 + 4 * w
        e(f"v_add_f32 v{l0}, v{l0}, v{l0+1}")
        e(f"v_add_f32 v{l0+2}, v{l0+2}, v{l0+3}")
        e(f"v_add_f32 v{l0}, v{l0}, v{l0+2}")
    e(f"v_mul_f32 v15, v{m0}, v{vST+12}")
    for w in range(1, 4):
        e(f"v_fmac_f32 v15, v{m0+w}, v{vST+12+4*w}")
    for r_ in (12, 13, 14, 15):
        e(f"v_min_u32 v{r_}, v{r_}, v16")
    e(f"buffer_store_dwordx4 v[12:15], v7, {SWS}, s69 offen")
    stamp(9)
    e("s_mov_b32 s61, s68")
    e("s_mov_b32 s60, 0")
    e(f"s_cmp_ge_u32 {sJ}, 14")
    e("s_cbranch_scc0 L_h1")
    e(f"buffer_store_dwordx4 v[12:15], v7, {SWS}, s68 offen sc1")
    e("s_branch L_final")
    e.label("L_h1")
    e("v_lshlrev_b32 v4, 15, v9")
    e("v_lshl_add_u32 v4, v10, 4, v4")
    e(f"s_lshl_b32 s66, {sHH}, 11")
    e(f"s_lshl_b32 s67, {sG}, 16")
    e("s_add_u32 s66, s66, s67")
    e(f"s_add_u32 s68, s66, {WS_OA}")
    e(f"s_add_u32 s69, s66, {WS_OB}")
    e(f"s_lshr_b32 s67, {sWAVE}, 1")
    e("s_lshl_b32 s67, s67, 3")
    e(f"s_lshr_b32 {sXM}, {sXM}, s67")
    if not apath or mapping != 0:
        e(f"s_mov_b32 {sXM}, 0")
    e(f"s_mov_b32 {sMISS}, 0xff")
    e(f"s_mov_b32 {sSPIN}, 0")
    e.label("L_h1poll")
    for s_ in range(8):
        e(f"s_bitcmp1_b32 {sMISS}, {s_}")
        e(f"s_cbranch_scc0 L_h1skip{s_}")
        e(f"s_bitcmp1_b32 {sXM}, {s_}")
        e(f"s_cselect_b32 s67, s68, s69")
        if s_:
            e(f"s_add_u32 s67, s67, {s_*4096}")
        e(f"buffer_load_dwordx4 {vr(vS+4*s_,4)}, v4, {SWS}, s67 offen sc1")
        e.label(f"L_h1skip{s_}")
    e("s_cmp_lg_u32 s60, 0")
    e("s_cbranch_scc1 L_h1w0")
    e("s_mov_b32 s60, 1")
    e(f"buffer_store_dwordx4 v[12:15], v7, {SWS}, s61 offen sc1")
    e("s_waitcnt vmcnt(1)")
    e("s_branch L_h1w1")
    e.label("L_h1w0")
    e("s_waitcnt vmcnt(0)")
    e.label("L_h1w1")
    for s_ in range(8):
        e(f"s_bitcmp1_b32 {sMISS}, {s_}")
        e(f"s_cbranch_scc0 L_h1chk{s_}")
        e(f"v_max3_u32 v7, v{vS+4*s_}, v{vS+4*s_+1}, v{vS+4*s_+2}")
        e(f"v_max_u32 v7, v7, v{vS+4*s_+3}")
        e("v_cmp_eq_u32 vcc, -1, v7")
        e(f"s_cmp_eq_u64 vcc, 0")
        e(f"s_cbranch_scc0 L_h1chk{s_}")
        e(f"s_bitset0_b32 {sMISS}, {s_}")
        e.label(f"L_h1chk{s_}")
    e(f"s_cmp_eq_u32 {sMISS}, 0")
    e("s_cbranch_scc1 L_h1done")
    e(f"s_add_u32 {sSPIN}, {sSPIN}, 1")
    e(f"s_cmp_lt_u32 {sSPIN}, 64")
    e(f"s_cselect_b32 {sXM}, {sXM}, 0")
    e(f"s_cmp_lt_u32 {sSPIN}, {SPIN_CAP}")
    e("s_cbranch_scc1 L_h1poll")
    e.label("L_h1done")
    stamp(10)
    e(f"v_max3_f32 v7, v{vS+2}, v{vS+6}, v{vS+10}")
    e(f"v_max3_f32 v7, v7, v{vS+14}, v{vS+18}")
    e(f"v_max3_f32 v7, v7, v{vS+22}, v{vS+26}")
    e(f"v_max_f32 v7, v7, v{vS+30}")
    for s_ in range(8):
        e(f"v_sub_f32 v{vS+4*s_+2}, v{vS+4*s_+2}, v7")
    for s_ in range(8):
        e(f"v_exp_f32 v{vS+4*s_+2}, v{vS+4*s_+2}")
    e("s_nop 0")
    e(f"v_mul_f32 v8, v{vS+2}, v{vS}")
    e(f"v_mul_f32 v11, v{vS+2}, v{vS+1}")
    e(f"v_mul_f32 v12, v{vS+2}, v{vS+3}")
    for s_ in range(1, 8):
        e(f"v_fmac_f32 v8, v{vS+4*s_+2}, v{vS+4*s_}")
        e(f"v_fmac_f32 v11, v{vS+4*s_+2}, v{vS+4*s_+1}")
        e(f"v_fmac_f32 v12, v{vS+4*s_+2}, v{vS+4*s_+3}")
    e("v_rcp_f32 v12, v12")
    e("v_lshlrev_b32 v13, 9, v9")
    e("v_lshl_add_u32 v13, v10, 2, v13")
    e("v_mul_f32 v8, v8, v12")
    e("v_mul_f32 v11, v11, v12")
    e(f"v_add_u32 v13, {OSB}, v13")
    e("v_cvt_pk_bf16_f32 v8, v8, v11")
    e("ds_write_b32 v13, v8")
    e(f"v_and_b32 v4, 1, v{vN}")
    e("v_lshlrev_b32 v4, 9, v4")
    e(f"v_lshl_add_u32 v4, v{vGq}, 4, v4")
    e(f"v_add_u32 v4, {OSB}, v4")
    e(f"v_lshlrev_b32 v5, 8, v{vN}")
    e(f"v_lshl_add_u32 v5, v{vGq}, 4, v5")
    e(f"s_lshl_b32 s66, {sG}, 1")
    e(f"s_add_u32 s66, s66, {sHH}")
    e("s_lshl_b32 s66, s66, 9")
    e(f"s_lshl_b32 s67, {sC7}, 14")
    e("s_add_u32 s66, s66, s67")
    e(f"s_lshl_b32 s67, {sWAVE}, 6")
    e("s_add_u32 s66, s66, s67")
    e(f"s_add_u32 s66, s66, {WS_YS}")
    e("s_waitcnt lgkmcnt(0)")
    e("s_barrier")
    for t in range(8):
        e(f"ds_read_b128 {vr(vST+4*t,4)}, v4 offset:{t*64}")
    for t in range(8):
        e(f"s_waitcnt lgkmcnt({7-t})")
        cc = "0" if t == 0 else vr(vS, 4)
        e(f"v_mfma_f32_16x16x32_bf16 {vr(vS,4)}, {vr(vWO+4*t,4)}, {vr(vST+4*t,4)}, {cc}")
    e("s_mov_b64 exec, s[62:63]")
    e("s_nop 7")
    for r_ in range(4):
        e(f"v_min_u32 v{vS+r_}, v{vS+r_}, v16")
    e(f"buffer_store_dwordx4 {vr(vS,4)}, v5, {SWS}, s66 offen sc1")
    stamp(11)
    if ts:
        e("s_mov_b64 exec, -1")
        e("s_branch L_ts")
    e("s_endpgm")

    e.label("L_final")
    e(f"s_lshl_b32 s66, {sG}, 1")
    e(f"s_add_u32 s66, s66, {sJ}")
    e("s_sub_u32 s66, s66, 14")
    e("s_cmp_ge_u32 s66, 14")
    e("s_cbranch_scc1 L_fin_exit")
    e("s_lshr_b32 s74, s66, 1")
    e("s_and_b32 s73, s66, 1")
    e("s_mul_i32 s66, s73, 896")
    e("s_add_u32 s52, s24, s66")
    e("s_addc_u32 s53, s25, 0")
    e("s_movk_i32 s54, 896")
    e("s_mov_b32 s55, 0x00020000")
    e("s_mov_b32 s60, s16")
    e("s_mov_b32 s61, s17")
    e("s_movk_i32 s62, 896")
    e("s_mov_b32 s63, 0x00020000")
    e("s_mov_b32 s56, s18")
    e("s_mov_b32 s57, s19")
    e("s_movk_i32 s58, 1792")
    e("s_mov_b32 s59, 0x00020000")
    e(f"v_lshlrev_b32 v4, 4, v{vLANE}")
    e(f"buffer_load_dwordx4 {vr(vST,4)}, v4, {SGW}, 0 offen")
    e(f"buffer_load_dwordx4 {vr(vST+4,4)}, v4, {SX}, 0 offen")
    e(f"v_mov_b32 v6, {XM}")
    e("ds_read2_b32 v[14:15], v6 offset0:1 offset1:2")
    e(f"v_lshlrev_b32 v5, 5, v{vLANE}")
    e("s_waitcnt vmcnt(0) lgkmcnt(0)")
    e("v_mov_b32 v7, 0")
    for k in range(4):
        e(f"v_lshlrev_b32 v8, 16, v{vST+k}")
        e(f"v_lshlrev_b32 v9, 16, v{vST+4+k}")
        e(f"v_and_b32 v10, 0xffff0000, v{vST+k}")
        e(f"v_and_b32 v11, 0xffff0000, v{vST+4+k}")
        e("v_mul_f32 v8, v8, v9")
        e("v_mul_f32 v10, v10, v11")
        e("v_cvt_pk_bf16_f32 v8, v8, v10")
        e("v_lshlrev_b32 v9, 16, v8")
        e("v_and_b32 v8, 0xffff0000, v8")
        e("v_add_f32 v7, v7, v9")
        e("v_add_f32 v7, v7, v8")
    e(f"v_lshlrev_b32 v8, 2, v{vLANE}")
    for m_ in (1, 2, 4, 8, 16, 32):
        e(f"v_xor_b32 v9, {m_*4}, v8")
        e("ds_bpermute_b32 v10, v9, v7")
        e("s_waitcnt lgkmcnt(0)")
        e("v_add_f32 v7, v7, v10")
    e("v_cvt_pk_bf16_f32 v7, v7, v7")
    e("v_lshlrev_b32 v7, 16, v7")
    e(f"v_mul_f32 v8, {f2u(-1.4426950408889634)}, v7")
    e("v_exp_f32 v8, v8")
    e("s_nop 0")
    e("v_add_f32 v8, 1.0, v8")
    e("v_rcp_f32 v8, v8")
    e("s_nop 0")
    e("v_cvt_pk_bf16_f32 v8, v8, v8")
    e("v_lshlrev_b32 v30, 16, v8")
    e("v_sub_f32 v9, 1.0, v30")
    e("v_cvt_pk_bf16_f32 v9, v9, v9")
    e("v_lshlrev_b32 v31, 16, v9")
    e(f"s_mov_b32 {sSPIN}, 0")
    e.label("L_fflag")
    e(f"buffer_load_dwordx4 {vr(vST,4)}, v5, {SWS}, 0 offen offset:{WS_XT} sc1" if WS_XT < 4096 else f"s_movk_i32 s66, {WS_XT}")
    e(f"buffer_load_dwordx4 {vr(vST,4)}, v5, {SWS}, s66 offen sc1")
    e(f"buffer_load_dwordx4 {vr(vST+4,4)}, v5, {SWS}, s66 offen offset:16 sc1")
    e("s_waitcnt vmcnt(0)")
    e(f"v_xor_b32 v6, v{vST+1}, v14")
    e(f"v_xor_b32 v7, v{vST+3}, v14")
    e(f"v_xor_b32 v8, v{vST+5}, v14")
    e(f"v_xor_b32 v9, v{vST+7}, v14")
    e("v_or_b32 v6, v6, v7")
    e("v_or3_b32 v6, v6, v8, v9")
    e("v_cmp_ne_u32 vcc, 0, v6")
    e("s_cmp_eq_u64 vcc, 0")
    e("s_cbranch_scc1 L_fflag_ok")
    e(f"s_add_u32 {sSPIN}, {sSPIN}, 1")
    e(f"s_cmp_lt_u32 {sSPIN}, {SPIN_CAP}")
    e("s_cbranch_scc1 L_fflag")
    e.label("L_fflag_ok")
    e(f"v_lshlrev_b32 v4, 9, v{vGq}")
    e(f"v_lshl_add_u32 v4, v{vN}, 2, v4")
    e("s_lshl_b32 s66, s74, 14")
    e("s_lshl_b32 s67, s73, 8")
    e("s_add_u32 s66, s66, s67")
    e(f"s_lshl_b32 s67, {sWAVE}, 6")
    e("s_add_u32 s66, s66, s67")
    e(f"s_add_u32 s66, s66, {WS_YS}")
    e("s_mul_i32 s68, s73, 896")
    e("s_lshl_b32 s67, s74, 7")
    e("s_add_u32 s68, s68, s67")
    e(f"s_lshl_b32 s67, {sWAVE}, 5")
    e("s_add_u32 s68, s68, s67")
    e(f"v_lshlrev_b32 v5, 1, v{vN}")
    e(f"v_lshlrev_b32 v9, 2, v{vLANE}")
    e("v_xor_b32 v10, 64, v9")
    e("v_xor_b32 v12, 128, v9")
    e(f"v_cmp_gt_u32 s[62:63], 16, v{vLANE}")
    e(f"s_mov_b32 {sMISS}, 0xff")
    e(f"s_mov_b32 {sSPIN}, 0")
    e.label("L_h2poll")
    for i in range(8):
        e(f"s_bitcmp1_b32 {sMISS}, {i}")
        e(f"s_cbranch_scc0 L_h2skip{i}")
        e(f"s_add_u32 s67, s66, {i*2048}")
        e(f"buffer_load_dword v{vS+i}, v4, {SWS}, s67 offen sc1")
        e.label(f"L_h2skip{i}")
    e("s_waitcnt vmcnt(0)")
    for i in range(8):
        e(f"s_bitcmp1_b32 {sMISS}, {i}")
        e(f"s_cbranch_scc0 L_h2chk{i}")
        e(f"v_cmp_eq_u32 vcc, -1, v{vS+i}")
        e(f"s_cmp_eq_u64 vcc, 0")
        e(f"s_cbranch_scc0 L_h2chk{i}")
        e(f"s_bitset0_b32 {sMISS}, {i}")
        e.label(f"L_h2chk{i}")
    e(f"s_cmp_eq_u32 {sMISS}, 0")
    e("s_cbranch_scc1 L_h2done")
    e(f"s_add_u32 {sSPIN}, {sSPIN}, 1")
    e(f"s_cmp_lt_u32 {sSPIN}, {SPIN_CAP}")
    e("s_cbranch_scc1 L_h2poll")
    e.label("L_h2done")
    stamp(10)
    e(f"v_add_f32 v8, v{vS}, v{vS+1}")
    e(f"v_add_f32 v7, v{vS+2}, v{vS+3}")
    e(f"v_add_f32 v13, v{vS+4}, v{vS+5}")
    e(f"v_add_f32 v11, v{vS+6}, v{vS+7}")
    e("v_add_f32 v8, v8, v7")
    e("v_add_f32 v13, v13, v11")
    e("v_mul_f32 v8, v8, v30")
    e("v_fmac_f32 v8, v13, v31")
    e("ds_bpermute_b32 v11, v10, v8")
    e("s_waitcnt lgkmcnt(0)")
    e("v_add_f32 v8, v8, v11")
    e("ds_bpermute_b32 v11, v12, v8")
    e("s_waitcnt lgkmcnt(0)")
    e("v_add_f32 v8, v8, v11")
    e("v_cvt_pk_bf16_f32 v8, v8, v8")
    e("s_mov_b64 exec, s[62:63]")
    e(f"buffer_store_short v8, v5, {SOUT}, s68 offen")
    e("s_or_b32 s66, s73, s74")
    e(f"s_or_b32 s66, s66, {sWAVE}")
    e("s_cmp_lg_u32 s66, 0")
    e("s_cbranch_scc1 L_nobump")
    e("v_add_u32 v15, 1, v15")
    e("v_mov_b32 v5, 0")
    e(f"buffer_store_dword v15, v5, {SWS}, 0 offen")
    e.label("L_nobump")
    stamp(11)
    if ts:
        e("s_mov_b64 exec, -1")
        e("s_branch L_ts")
    e.label("L_fin_exit")
    if ts:
        e("s_branch L_ts")
    e("s_endpgm")

    e.label("L_helper")
    e.q = []
    e("s_setprio 3")
    e(f"v_lshrrev_b32 v4, 2, v{vLANE}")
    e(f"v_and_b32 v5, 3, v{vLANE}")
    e(f"v_lshrrev_b32 v6, 5, v{vLANE}")
    e("v_lshlrev_b32 v6, 1, v6")
    e("v_xor_b32 v5, v5, v6")
    e("v_lshlrev_b32 v5, 4, v5")
    e(f"v_lshl_add_u32 v{vW}, v4, 13, v5")
    e(f"s_lshl_b32 s67, {sH}, 10")
    e(f"s_lshl_b32 s68, {sJ}, 6")
    e("s_add_u32 s67, s67, s68")
    e(f"v_and_b32 v4, 1, v{vN}")
    e("s_movk_i32 s66, 896")
    e("v_mul_lo_u32 v4, v4, s66")
    e(f"v_lshl_add_u32 v4, v{vGq}, 4, v4")
    e("v_mov_b32 v7, 0")
    e(f"v_mov_b32 v8, {XM}")
    e("v_mov_b32 v9, 0")
    e("ds_write_b32 v8, v9 offset:12")
    e(f"v_lshlrev_b32 v5, 4, v{vLANE}")
    e(f"s_lshl_b32 s68, {sG}, 1")
    e(f"s_add_u32 s68, s68, {sB}")
    e("s_lshl_b32 s68, s68, 3")
    e(f"s_add_u32 s68, s68, {sS}")
    e("s_lshl_b32 s68, s68, 12")
    e(f"s_add_u32 s70, s68, {WS_OA}")
    e(f"s_add_u32 s68, s68, {WS_OB}")
    e(f"s_lshl_b32 s69, {sG}, 1")
    e(f"s_add_u32 s69, s69, {sHH}")
    e("s_lshl_b32 s69, s69, 9")
    e(f"s_lshl_b32 s71, {sC7}, 14")
    e("s_add_u32 s69, s69, s71")
    e(f"s_add_u32 s69, s69, {WS_YS}")
    e(f"s_cmp_lt_u32 {sJ}, 14")
    e("s_cselect_b32 s69, s69, 0x40000000")
    e("v_mov_b32 v8, -1")
    e("v_mov_b32 v9, -1")
    e("v_mov_b32 v10, -1")
    e("v_mov_b32 v11, -1")
    e(f"v_cmp_gt_u32 s[62:63], 32, v{vLANE}")
    e("s_waitcnt lgkmcnt(0)")
    stamp(1)
    e("s_mov_b32 s36, s12")
    e("s_mov_b32 s37, s13")
    e("s_mov_b32 s38, 3670016")
    e("s_mov_b32 s39, 0x00020000")
    e(f"s_mov_b32 m0, {AUX}")
    e("s_mov_b32 s44, s22")
    e("s_mov_b32 s45, s23")
    e(f"s_mov_b32 s46, {WS_SIZE}")
    e("s_mov_b32 s47, 0x00020000")
    for i in range(28 if b0 != 2 else 0):
        e.vm(f"buffer_load_dwordx4 v{vW}, {SWQ}, s67 offen{NT} lds", "WQ")
        if i < 27:
            e("s_add_u32 m0, m0, 1024")
            e(f"s_add_u32 s67, s67, {16*8192}")
    if b0 == 1:
        e("s_barrier")
    e.vm(f"buffer_load_dword v26, v7, {SWS}, 0 offen", "EP")
    e("s_mov_b32 s52, s24")
    e("s_mov_b32 s53, s25")
    e("s_movk_i32 s54, 1792")
    e("s_mov_b32 s55, 0x00020000")
    XF = 128
    for t in range(14):
        e.vm(f"buffer_load_dwordx4 {vr(XF+4*t,4)}, v4, {SX}, 0 offen offset:{t*64}", "X")
    for q in range(4):
        e.vm(f"buffer_store_dwordx4 v[8:11], v5, {SWS}, s68 offen offset:{q*1024} sc1", "CL")
    for q in range(4):
        e.vm(f"buffer_store_dwordx4 v[8:11], v5, {SWS}, s70 offen offset:{q*1024} sc1", "CL")
    e("s_mov_b64 exec, s[62:63]")
    e.vm(f"buffer_store_dwordx4 v[8:11], v5, {SWS}, s69 offen sc1", "CL")
    e("s_mov_b64 exec, -1")
    stamp(2)
    e(f"v_bfe_u32 v12, v{vLANE}, 2, 2")
    e(f"v_lshl_add_u32 v12, v{vGq}, 3, v12")
    e(f"v_and_b32 v13, 3, v{vLANE}")
    e("v_lshlrev_b32 v13, 3, v13")
    e("v_lshl_add_u32 v13, v12, 6, v13")
    e(f"v_add_u32 v13, {AUX}, v13")
    e(f"v_and_b32 v14, 1, v{vGq}")
    for ct in range(2):
        e(f"v_xor_b32 v6, {ct}, v14")
        e(f"v_lshl_add_u32 v{16+ct}, v6, 5, v13")
    e(f"v_and_b32 v6, 1, v{vN}")
    e("v_lshlrev_b32 v6, 11, v6")
    e(f"v_lshrrev_b32 v7, 1, v{vN}")
    e("v_lshl_add_u32 v6, v7, 6, v6")
    e(f"v_lshl_add_u32 v6, v{vGq}, 4, v6")
    e("v_cmp_eq_u32 s[56:57], 1, v7")
    e(f"v_cmp_gt_u32 s[58:59], 4, v{vN}")
    e(f"s_lshl_b32 s66, {sG}, 12")
    e(f"s_lshl_b32 s67, {sJ}, 7")
    e("s_add_u32 s66, s66, s67")
    e(f"s_add_u32 s66, s66, {WS_QP}")
    e("s_getreg_b32 s72, hwreg(HW_REG_XCC_ID)")
    e("s_and_b32 s72, s72, 15")
    e(f"v_lshlrev_b32 v24, 4, v{vLANE}")
    e(f"s_lshl_b32 s68, {sG}, 12")
    e(f"s_lshl_b32 s67, {sB}, 11")
    e("s_add_u32 s68, s68, s67")
    e(f"s_add_u32 s68, s68, {WS_QP}")
    e(f"s_lshl_b32 s67, {sG}, 4")
    e(f"s_add_u32 s67, s67, {sJ}")
    e("s_lshl_b32 s67, s67, 3")
    e(f"s_add_u32 s67, s67, {WS_XT}")
    e("v_mov_b32 v28, s72")
    e("v_mov_b32 v7, 0")
    e(f"v_cmp_eq_u32 s[62:63], 0, v{vLANE}")
    e(f"v_lshlrev_b32 v25, 3, v{vLANE}")
    e(f"v_add_u32 v25, 0, v25")
    e.wait_tag("WQ", "X", "EP")
    if b0 == 2:
        e("s_barrier")
    stamp(3)
    e("s_mov_b32 s69, 0x9E3779B1")
    e("v_mul_lo_u32 v27, v26, s69")
    e("v_add_u32 v27, 0x7F4A7C15, v27")
    e("v_mov_b32 v29, v27")
    WF = 32

    def qreads(t):
        for ct in range(2):
            d = WF + (t & 3) * 8 + ct * 4
            e(f"ds_read_b64_tr_b16 {vr(d,2)}, v{16+ct} offset:{t*2048}")
            e(f"ds_read_b64_tr_b16 {vr(d+2,2)}, v{16+ct} offset:{t*2048+256}")
    for t in range(3):
        qreads(t)
    for t in range(14):
        ahead = min(13, t + 2) - t
        e(f"s_waitcnt lgkmcnt({4*ahead})")
        for ct in range(2):
            d = WF + (t & 3) * 8 + ct * 4
            cc = "0" if t == 0 else vr(184 + 4 * ct, 4)
            e(f"v_mfma_f32_16x16x32_bf16 {vr(184+4*ct,4)}, {vr(d,4)}, {vr(XF+4*t,4)}, {cc}")
        if t + 3 < 14:
            qreads(t + 3)
    e("s_waitcnt vmcnt(0)")
    e.q = []
    e("s_nop 7")
    e("v_cvt_pk_bf16_f32 v32, v184, v185")
    e("v_cvt_pk_bf16_f32 v33, v186, v187")
    e("v_cvt_pk_bf16_f32 v34, v188, v189")
    e("v_cvt_pk_bf16_f32 v35, v190, v191")
    e("v_mov_b32 v45, v27")
    e("v_mov_b32 v47, v27")
    e("v_cndmask_b32 v44, v32, v34, s[56:57]")
    e("v_cndmask_b32 v46, v33, v35, s[56:57]")
    e(f"s_add_u32 s69, s66, {WS_QA - WS_QP}")
    e(f"s_add_u32 s70, s67, {WS_XA - WS_XT}")
    e("s_mov_b64 exec, s[58:59]")
    e(f"buffer_store_dwordx4 v[44:47], v6, {SWS}, s69 offen")
    e("s_mov_b64 exec, s[62:63]")
    e(f"buffer_store_dwordx2 v[28:29], v7, {SWS}, s70 offen")
    e("s_mov_b64 exec, -1")
    stamp(6)
    e(f"s_lshl_b32 s74, {sG}, 7")
    e(f"s_add_u32 s74, s74, {WS_XT}")
    e(f"v_cmp_gt_u32 s[60:61], 16, v{vLANE}")
    e(f"s_mov_b32 {sSPIN}, 0")
    e("s_mov_b32 s73, 0")
    e.label("L_qpoll")
    e(f"s_cmp_lt_u32 {sSPIN}, {qa_rounds}")
    e(f"s_cselect_b32 s69, {WS_QA - WS_QP}, 0")
    e(f"s_cselect_b32 s70, {WS_XA - WS_XT}, 0")
    e("s_add_u32 s69, s69, s68")
    e("s_add_u32 s70, s70, s74")
    e(f"buffer_load_dwordx4 v[64:67], v24, {SWS}, s69 offen sc1")
    e(f"buffer_load_dwordx4 v[68:71], v24, {SWS}, s69 offen offset:1024 sc1")
    e("s_mov_b64 exec, s[60:61]")
    e(f"buffer_load_dwordx2 v[30:31], v25, {SWS}, s70 offen sc1")
    e("s_mov_b64 exec, -1")
    e("v_mov_b32 v73, 0")
    e("s_cmp_lg_u32 s73, 0")
    e("s_cbranch_scc1 L_qw0")
    e("s_mov_b32 s73, 1")
    e("s_mov_b64 exec, s[58:59]")
    e(f"buffer_store_dwordx4 v[44:47], v6, {SWS}, s66 offen sc1")
    e("s_mov_b64 exec, s[62:63]")
    e(f"buffer_store_dwordx2 v[28:29], v7, {SWS}, s67 offen sc1")
    e("s_mov_b64 exec, -1")
    e("s_waitcnt vmcnt(2)")
    e("s_branch L_qw1")
    e.label("L_qw0")
    e("s_waitcnt vmcnt(0)")
    e.label("L_qw1")
    e("v_xor_b32 v72, v65, v27")
    e("s_mov_b64 exec, s[60:61]")
    e("v_xor_b32 v73, v31, v27")
    e("s_mov_b64 exec, -1")
    e("v_xor_b32 v74, v67, v27")
    e("v_or3_b32 v72, v72, v73, v74")
    e("v_xor_b32 v74, v69, v27")
    e("v_xor_b32 v75, v71, v27")
    e("v_or3_b32 v72, v72, v74, v75")
    if ts:
        for rr in range(3):
            e(f"s_cmp_eq_u32 {sSPIN}, {rr}")
            e(f"s_cbranch_scc0 L_rs{rr}")
            stamp(9 + rr)
            e.label(f"L_rs{rr}")
    e("v_cmp_ne_u32 vcc, 0, v72")
    e("s_cmp_eq_u64 vcc, 0")
    e("s_cbranch_scc1 L_qready")
    e(f"s_add_u32 {sSPIN}, {sSPIN}, 1")
    e(f"s_cmp_lt_u32 {sSPIN}, {SPIN_CAP}")
    e("s_cbranch_scc1 L_qpoll")
    e.label("L_qready")
    stamp(7)
    if ts:
        e(f"s_mov_b32 s84, {sSPIN}")
    e("v_mov_b32 v65, v66")
    e("v_mov_b32 v69, v70")
    e(f"v_lshlrev_b32 v9, 3, v{vLANE}")
    e(f"v_add_u32 v9, {QS}, v9")
    e("ds_write_b64 v9, v[64:65]")
    e("ds_write_b64 v9, v[68:69] offset:512")
    e("s_mov_b64 exec, s[60:61]")
    e("v_cmp_eq_u32 vcc, s72, v30")
    e("s_mov_b64 exec, -1")
    e("s_nop 1")
    e("v_mov_b32 v8, vcc_lo")
    e("v_mov_b32 v9, v27")
    e("v_mov_b32 v10, v26")
    e("v_mov_b32 v11, 1")
    e(f"v_mov_b32 v12, {XM}")
    e("s_waitcnt lgkmcnt(0)")
    e("ds_write_b128 v12, v[8:11]")
    e("s_waitcnt lgkmcnt(0)")
    stamp(8)
    e("s_cmp_lg_u32 s73, 0")
    e("s_cbranch_scc1 L_qBd")
    e("s_mov_b64 exec, s[58:59]")
    e(f"buffer_store_dwordx4 v[44:47], v6, {SWS}, s66 offen sc1")
    e("s_mov_b64 exec, s[62:63]")
    e(f"buffer_store_dwordx2 v[28:29], v7, {SWS}, s67 offen sc1")
    e("s_mov_b64 exec, -1")
    e.label("L_qBd")
    e("s_barrier")
    e("s_barrier")
    if ts:
        e("s_branch L_ts")
    e("s_endpgm")

    if ts:
        e.label("L_ts")
        e("s_waitcnt lgkmcnt(0)")
        e("s_mov_b32 s44, s22")
        e("s_mov_b32 s45, s23")
        e(f"s_mov_b32 s46, {WS_SIZE}")
        e("s_mov_b32 s47, 0x00020000")
        e("s_mul_i32 s66, s2, 5")
        e("s_add_u32 s66, s66, s3")
        e("s_lshl_b32 s66, s66, 6")
        e(f"s_add_u32 s66, s66, {WS_TS}")
        e("v_mov_b32 v4, s66")
        e(f"v_cmp_eq_u32 vcc, 0, v{vLANE}")
        e("s_and_saveexec_b64 s[68:69], vcc")
        for i in range(12):
            e(f"v_mov_b32 v5, s{76+2*i}")
            e(f"buffer_store_dword v5, v4, {SWS}, 0 offen offset:{4*i}")
        e("s_endpgm")
    e.label("L_end")
    e("s_endpgm")
    A('.section .rodata,"a"')
    A(".p2align 6")
    A(f".amdhsa_kernel {NAME}_kernel")
    A(f"  .amdhsa_next_free_vgpr {NVGPR}")
    A("  .amdhsa_next_free_sgpr 102")
    A(f"  .amdhsa_accum_offset {NVGPR}")
    A("  .amdhsa_group_segment_fixed_size 0")
    A("  .amdhsa_kernarg_size 112")
    A("  .amdhsa_user_sgpr_count 2")
    A("  .amdhsa_user_sgpr_kernarg_segment_ptr 1")
    A("  .amdhsa_system_sgpr_workgroup_id_x 1")
    A(".end_amdhsa_kernel")
    return "\n".join(e.o) + "\n"


if __name__ == "__main__":
    out = sys.argv[1] if len(sys.argv) > 1 else "k2.s"
    kw = {}
    for a in sys.argv[2:]:
        if a == "ts":
            kw["ts"] = True
        elif "=" in a:
            k, v = a.split("=")
            kw[k] = int(v)
    open(out, "w").write(gen(**kw))
```

```python
import sys, struct

NAME = "gated_mix__gqa_block_cached__gqa_block_cached__decode"
HDR = open("cdna_kernels/%s.s.ref" % NAME).read().split("; Override launch geometry")[0]

WS_EP = 0x0
WS_XT = 0x1000
WS_QP = 0x40000
WS_QA = 0x60000
WS_XA = 0x2000
WS_OB = 0x80000
WS_OA = 0x180000
WS_YS = 0x280000
WS_TS = 0x2A0000
WS_SIZE = 0x2C0000
RING = 32768
AUX = 131072
QS = AUX + 28672
MX = QS + 1024
XM = MX + 64
LX = MX + 128
OSB = LX + 128
OPART = AUX
LDS_SIZE = 163840
SPIN_CAP = 40000


def f2u(f):
    return struct.unpack("<I", struct.pack("<f", f))[0]


class E:
    def __init__(self):
        self.o = []
        self.q = []

    def __call__(self, s):
        self.o.append("  " + s)

    def label(self, l):
        self.o.append(l + ":")

    def vm(self, s, tag):
        self.o.append("  " + s)
        self.q.append(tag)

    def wait_tag(self, *tags):
        idx = max((i for i, t in enumerate(self.q) if t in tags), default=-1)
        if idx < 0:
            return
        n = len(self.q) - 1 - idx
        self.wait_n(n)

    def wait_n(self, n):
        if n >= len(self.q):
            return
        self.o.append(f"  s_waitcnt vmcnt({min(n, 63)})")
        self.q = self.q[len(self.q) - n:] if n else []


def vr(a, n):
    return f"v[{a}:{a+n-1}]"


def gen(ts=False, stag=5, nt=True, apath=True, ni=10, quantum=2, qa_rounds=2, deep_pre=1, deep_from=99, ni_deep=32, b0=1, mapping=0, nreg=3, dbgts=0):
    e = E()
    NT = " nt" if nt else ""
    sWAVE = "s3"
    sG, sJ, sBR, sH, sB, sS = "s4", "s5", "s6", "s7", "s26", "s27"
    SK, SV, SWQ, SWO, SWS, SDBG, SX, SOUT, SGW = ("s[28:31]", "s[32:35]", "s[36:39]", "s[40:43]", "s[44:47]",
                                                  "s[48:51]", "s[52:55]", "s[56:59]", "s[60:63]")
    sRING, sROT = "s64", "s65"
    sMISS, sSPIN, sC = "s70", "s71", "s72"
    sHH, sC7, sXM = "s73", "s74", "s75"
    vLANE, vN, vGq = 1, 2, 3
    vDMA = 12
    vKA = 16
    vVA = 20
    vW = 28
    vM, vL = 30, 31
    vST = 32
    vS = 64
    vQ = 128
    vWO = 160
    vR0, vR1 = 192, 224
    vR2 = vS + 32
    NVGPR = 256

    def stamp(i):
        if ts:
            e(f"s_memrealtime s[{76+2*i}:{77+2*i}]")

    A = e.o.append
    A(HDR.rstrip())
    A("; Override launch geometry by editing the next line (default: block=256,")
    A(f"; @launch grid=(256,1,1) block=(320,1,1) lds={LDS_SIZE}")
    A('.amdgcn_target "amdgcn-amd-amdhsa--gfx950"')
    A(".text")
    A(f".globl {NAME}_kernel")
    A(".p2align 8")
    A(f".type {NAME}_kernel,@function")
    A(f"{NAME}_kernel:")
    e("s_cmp_ge_u32 s2, 256")
    e("s_cbranch_scc1 L_end")
    e("s_and_b32 s66, s2, 7")
    e("s_lshr_b32 s67, s2, 3")
    if mapping == 0:
        e("s_lshr_b32 s6, s66, 2")
    else:
        e("s_lshr_b32 s6, s2, 7")
    e("s_mul_i32 s68, s6, 40")
    e("s_add_u32 s68, s68, 8")
    e("s_load_dwordx8 s[8:15], s[0:1], s68")
    e("s_load_dwordx8 s[16:23], s[0:1], 80")
    e("s_load_dwordx2 s[24:25], s[0:1], 0")
    if dbgts:
        for i in range(1, 12):
            e(f"s_mov_b32 s{76+2*i}, 0")
    stamp(0)
    if mapping == 0:
        e("s_and_b32 s69, s67, 1")
        e("s_lshl_b32 s4, s66, 1")
        e("s_add_u32 s4, s4, s69")
        e("s_lshr_b32 s5, s67, 1")
        e("s_and_b32 s7, s4, 7")
        e("s_lshr_b32 s26, s5, 3")
        e("s_and_b32 s27, s5, 7")
    else:
        e("s_lshr_b32 s4, s67, 1")
        e("s_and_b32 s26, s67, 1")
        e("s_lshl_b32 s5, s66, 1")
        e("s_add_u32 s5, s5, s26")
        e("s_and_b32 s7, s4, 7")
        e("s_add_u32 s27, s66, s4")
        e("s_and_b32 s27, s27, 7")
    e(f"v_lshrrev_b32 v4, 6, v0")
    e(f"v_and_b32 v{vLANE}, 63, v0")
    e("v_readfirstlane_b32 s3, v4")
    e(f"v_and_b32 v{vN}, 15, v{vLANE}")
    e(f"v_lshrrev_b32 v{vGq}, 4, v{vLANE}")
    e("s_and_b32 s73, s5, 1")
    e("s_lshr_b32 s74, s5, 1")
    e(f"v_lshrrev_b32 v4, 3, v{vLANE}")
    e(f"v_and_b32 v5, 7, v{vLANE}")
    e(f"v_lshrrev_b32 v6, 4, v{vLANE}")
    e("v_lshlrev_b32 v6, 1, v6")
    e("v_xor_b32 v5, v5, v6")
    e("v_lshlrev_b32 v5, 4, v5")
    e("s_cmp_eq_u32 s3, 4")
    e("s_cbranch_scc1 L_helper")

    e("s_movk_i32 s66, 896")
    e(f"v_mad_u32_u24 v{vW+1}, v4, s66, v5")
    e(f"v_lshrrev_b32 v4, 5, v{vLANE}")
    e(f"v_and_b32 v5, 31, v{vLANE}")
    for i in range(4):
        e(f"v_add_u32 v6, {2*i}, v4")
        e("v_lshlrev_b32 v6, 1, v6")
        e("v_xor_b32 v6, v6, v5")
        e("v_lshlrev_b32 v6, 4, v6")
        e(f"v_lshl_add_u32 v{vDMA+i}, v4, 9, v6")
    e(f"v_lshrrev_b32 v4, 2, v{vLANE}")
    e(f"v_and_b32 v5, 3, v{vLANE}")
    e(f"v_lshrrev_b32 v6, 5, v{vLANE}")
    e("v_lshlrev_b32 v6, 1, v6")
    e("v_xor_b32 v5, v5, v6")
    e("v_lshlrev_b32 v5, 4, v5")
    e(f"v_lshl_add_u32 v{vW}, v4, 13, v5")
    e(f"s_lshl_b32 s56, {sH}, 10")
    e(f"s_lshl_b32 s57, {sJ}, 6")
    e("s_add_u32 s56, s56, s57")
    e(f"s_mul_i32 s57, {sWAVE}, {7*16*8192}")
    e("s_add_u32 s56, s56, s57")
    e(f"s_mul_i32 s57, {sWAVE}, 7168")
    e(f"s_add_u32 s57, s57, {AUX}")
    e(f"s_lshl_b32 {sRING}, {sWAVE}, 15")
    e("s_lshl_b32 s66, s2, 2")
    e(f"s_add_u32 s66, s66, {sWAVE}")
    e(f"s_mul_i32 s66, s66, {stag}")
    e("s_and_b32 s66, s66, 31")
    e(f"s_lshl_b32 {sROT}, s66, 12")
    e(f"s_lshl_b32 s66, {sB}, 3")
    e(f"s_add_u32 s66, s66, {sH}")
    e("s_lshl_b32 s66, s66, 22")
    e(f"s_lshl_b32 s67, {sS}, 19")
    e("s_add_u32 s66, s66, s67")
    e(f"s_lshl_b32 s67, {sWAVE}, 17")
    e("s_add_u32 s66, s66, s67")
    e(f"s_lshl_b32 s68, {sH}, 1")
    e(f"s_add_u32 s68, s68, {sHH}")
    e("s_lshl_b32 s68, s68, 8")
    e(f"s_lshl_b32 s69, {sWAVE}, 6")
    e("s_add_u32 s68, s68, s69")
    e("s_mul_i32 s68, s68, 896")
    e(f"s_lshl_b32 s69, {sC7}, 7")
    e("s_add_u32 s68, s68, s69")
    e(f"s_cmp_lt_u32 {sJ}, 14")
    e("s_cselect_b32 s68, s68, 0x40000000")
    e("s_waitcnt lgkmcnt(0)")
    stamp(1)
    e("s_add_u32 s28, s8, s66")
    e("s_addc_u32 s29, s9, 0")
    e("s_mov_b32 s30, 0x20000")
    e("s_mov_b32 s31, 0x00020000")
    e("s_mov_b32 s40, s14")
    e("s_mov_b32 s41, s15")
    e("s_mov_b32 s42, 3670016")
    e("s_mov_b32 s43, 0x00020000")
    e("s_add_u32 s32, s10, s66")
    e("s_addc_u32 s33, s11, 0")
    e("s_mov_b32 s34, 0x20000")
    e("s_mov_b32 s35, 0x00020000")
    if b0 == 1:
        e("s_barrier")
    if b0 == 2:
        e("s_mov_b32 s36, s12")
        e("s_mov_b32 s37, s13")
        e("s_mov_b32 s38, 3670016")
        e("s_mov_b32 s39, 0x00020000")
        for i in range(7):
            e(f"s_add_u32 m0, s57, {i*1024}" if i else "s_mov_b32 m0, s57")
            e(f"s_add_u32 s58, s56, {i*16*8192}" if i else "s_mov_b32 s58, s56")
            e.vm(f"buffer_load_dwordx4 v{vW}, {SWQ}, s58 offen{NT} lds", "WQ")

    if nreg == 3:
        order = [3, 4, 5, 0, 1, 2] + list(range(6, 16))
        regt = {0: vR0, 1: vR1, 2: vR2}
        wo_pos = 2
        last_lds = 5
    else:
        order = [4, 3, 5, 6, 7, 0, 1, 2] + list(range(8, 16))
        regt = {0: vR0, 1: vR1, 2: vR2, 3: vWO, 4: vST}
        wo_pos = 4
        last_lds = 7
    ulist = [("W", 0, 0), ("W", 0, 1)]
    for t in range(16):
        ulist += [("K", t, 0), ("K", t, 1)]
    for t in order:
        ulist += [("V", t, 0), ("V", t, 1)]
    ilist = [(k, t, u, i) for (k, t, u) in ulist for i in range(4)]
    st = dict(next=0, inflight=[], free=[0, 1, 2], slot={}, landed=set())

    def emit_issue(item):
        kind, tile, u, i = item
        if kind == "W":
            ii = u * 4 + i
            e(f"s_add_u32 m0, {sRING}, {24576 + ii*1024}")
            e(f"s_add_u32 s70, s68, {ii*8*896}")
            e.vm(f"buffer_load_dwordx4 v{vW+1}, {SWO}, s70 offen{NT} lds", item)
            return
        tslot = st["slot"][(kind, tile)]
        srd = SK if kind == "K" else SV
        off = (2 * tile + u) * 4096
        so = "s75x" if off else sROT
        so = "s61" if off else sROT
        if i == 0:
            e(f"s_add_u32 m0, {sRING}, {tslot*8192 + u*4096}")
            if off:
                e(f"s_add_u32 s61, {sROT}, {off}")
                e("s_and_b32 s61, s61, 0x1ffff")
            else:
                e("s_nop 0")
        e.vm(f"buffer_load_dwordx4 v{vDMA+i}, {srd}, {so} offen offset:{i*1024}{NT} lds", item)

    def try_issue():
        while st["next"] < len(ilist):
            item = ilist[st["next"]]
            kind, tile, u, i = item
            lim = ni_deep if (kind == "V" and order.index(tile) >= deep_from) else ni
            if len(st["inflight"]) + quantum > lim:
                return
            if kind != "W" and u == 0 and i == 0:
                if not st["free"]:
                    return
                st["slot"][(kind, tile)] = st["free"].pop(0)
            for q_ in range(quantum):
                item = ilist[st["next"]]
                emit_issue(item)
                st["inflight"].append(item)
                st["next"] += 1

    def land(*units):
        for un in units:
            last = un + (3,)
            while last not in st["landed"]:
                if not st["inflight"]:
                    try_issue()
                    assert st["inflight"], ("stuck", un)
                grp = st["inflight"][:quantum]
                e.wait_tag(grp[-1])
                for g_ in grp:
                    st["landed"].add(g_)
                st["inflight"] = st["inflight"][quantum:]
                try_issue()

    def release(kind, tile):
        st["free"].append(st["slot"][(kind, tile)])
        try_issue()

    try_issue()
    stamp(2)
    e(f"v_and_b32 v4, 7, v{vN}")
    e("v_lshlrev_b32 v4, 1, v4")
    e(f"v_lshlrev_b32 v5, 9, v{vN}")
    e(f"v_add_u32 v5, {sRING}, v5")
    for tt in range(4):
        e(f"v_add_u32 v6, {4*tt}, v{vGq}")
        e("v_xor_b32 v6, v6, v4")
        e(f"v_lshl_add_u32 v{vKA+tt}, v6, 4, v5")
    e(f"v_lshrrev_b32 v4, 2, v{vLANE}")
    e(f"v_and_b32 v5, 3, v{vLANE}")
    e("v_lshlrev_b32 v5, 3, v5")
    e(f"v_lshl_add_u32 v5, v4, 9, v5")
    e(f"v_add_u32 v5, {sRING}, v5")
    e("v_and_b32 v4, 7, v4")
    for d in range(8):
        e(f"v_xor_b32 v6, {d}, v4")
        e(f"v_lshl_add_u32 v{vVA+d}, v6, 5, v5")
    e("s_mov_b32 s44, s22")
    e("s_mov_b32 s45, s23")
    e(f"s_mov_b32 s46, {WS_SIZE}")
    e("s_mov_b32 s47, 0x00020000")
    e(f"s_mov_b32 {sC}, {f2u(1.4426950408889634/16.0)}")
    e(f"v_mov_b32 v{vM}, 0xff800000")
    e(f"v_mov_b32 v{vL}, 0")

    if b0 == 2:
        e.wait_tag("WQ")
        e("s_barrier")

    def kread(dst, tslot):
        for t in range(8):
            e(f"ds_read_b128 {vr(dst+4*t,4)}, v{vKA+(t&3)} offset:{tslot*8192 + (t>>2)*256}")

    for tile, R in sorted(regt.items()):
        land(("K", tile, 0), ("K", tile, 1))
        kread(R, st["slot"][("K", tile)])
        e("s_waitcnt lgkmcnt(0)")
        release("K", tile)
    land(("W", 0, 0), ("W", 0, 1), ("K", last_lds, 0), ("K", last_lds, 1)) if deep_pre else land(("W", 0, 0), ("W", 0, 1))
    stamp(3)
    e("s_barrier")
    stamp(4)
    e(f"v_and_b32 v4, 1, v{vN}")
    e("v_lshlrev_b32 v4, 9, v4")
    e(f"v_lshl_add_u32 v4, v{vGq}, 4, v4")
    e(f"v_add_u32 v4, {QS}, v4")
    for t in range(8):
        e(f"ds_read_b128 {vr(vQ+4*t,4)}, v4 offset:{t*64}")

    def runmax(p):
        e(f"v_max3_f32 v{vM}, v{vM}, v{vS+4*p}, v{vS+4*p+1}")
        e(f"v_max3_f32 v{vM}, v{vM}, v{vS+4*p+2}, v{vS+4*p+3}")

    def kmfma(p, src, counted):
        for t in range(8):
            if counted:
                e(f"s_waitcnt lgkmcnt({7-t})")
            cc = "0" if t == 0 else vr(vS + 4 * p, 4)
            e(f"v_mfma_f32_16x16x32_bf16 {vr(vS+4*p,4)}, {vr(src+4*t,4)}, {vr(vQ+4*t,4)}, {cc}")

    for p, tile in enumerate(order):
        if tile in regt:
            if p == 0:
                e("s_waitcnt lgkmcnt(0)")
            kmfma(p, regt[tile], False)
            if p > 0:
                runmax(p - 1)
        else:
            land(("K", tile, 0), ("K", tile, 1))
            kread(vST, st["slot"][("K", tile)])
            if p > 0:
                runmax(p - 1)
            kmfma(p, vST, True)
            release("K", tile)
        if p == wo_pos:
            e(f"v_bfe_u32 v5, v{vLANE}, 2, 2")
            e(f"v_lshl_add_u32 v5, v{vGq}, 3, v5")
            e(f"v_and_b32 v6, 3, v{vLANE}")
            e("v_lshlrev_b32 v6, 3, v6")
            e("v_lshl_add_u32 v6, v5, 7, v6")
            e("v_bfe_u32 v7, v5, 1, 2")
            e(f"v_xor_b32 v8, {sWAVE}, v7")
            e("v_lshl_add_u32 v8, v8, 5, v6")
            e("v_add_u32 v7, 2, v7")
            e("v_and_b32 v7, 3, v7")
            e(f"v_xor_b32 v9, {sWAVE}, v7")
            e("v_lshl_add_u32 v9, v9, 5, v6")
            e("v_add_u32 v9, 512, v9")
            e("v_add_u32 v10, 0x10000, v8")
            e("v_add_u32 v11, 0x10000, v9")
            for t in range(8):
                off = (t >> 1) * RING + 24576 + (t & 1) * 32 * 128
                a0, a1 = (8, 9) if off <= 65535 else (10, 11)
                off &= 0xFFFF
                e(f"ds_read_b64_tr_b16 {vr(vWO+4*t,2)}, v{a0} offset:{off}")
                e(f"ds_read_b64_tr_b16 {vr(vWO+4*t+2,2)}, v{a1} offset:{off}")
            e("s_waitcnt lgkmcnt(0)")
            e("s_barrier")
            st["free"].append(3)
            try_issue()
            stamp(5)
    stamp(6)
    e("s_nop 7")
    e("s_nop 1")
    runmax(15)
    e(f"v_lshlrev_b32 v4, 2, v{vLANE}")
    for m_ in (16, 32):
        e(f"v_xor_b32 v5, {m_*4}, v4")
        e(f"ds_bpermute_b32 v6, v5, v{vM}")
        e("s_waitcnt lgkmcnt(0)")
        e(f"v_max_f32 v{vM}, v{vM}, v6")
    e(f"v_mul_f32 v{vM}, {sC}, v{vM}")
    e(f"v_and_b32 v5, 1, v{vN}")
    e("v_lshlrev_b32 v5, 4, v5")
    e(f"s_lshl_b32 s66, {sWAVE}, 2")
    e(f"s_add_u32 s66, s66, {MX}")
    e("v_add_u32 v6, s66, v5")
    e(f"ds_write_b32 v6, v{vM}")

    def pcalc(p):
        for r_ in range(4):
            e(f"v_fma_f32 v{vS+4*p+r_}, v{vS+4*p+r_}, {sC}, -v{vM}")
        for r_ in range(4):
            e(f"v_exp_f32 v{vS+4*p+r_}, v{vS+4*p+r_}")
        e("s_nop 0")
        e(f"v_cvt_pk_bf16_f32 v{vQ+2*p}, v{vS+4*p}, v{vS+4*p+1}")
        e(f"v_cvt_pk_bf16_f32 v{vQ+2*p+1}, v{vS+4*p+2}, v{vS+4*p+3}")
        e(f"v_add_f32 v4, v{vS+4*p}, v{vS+4*p+1}")
        e(f"v_add_f32 v5, v{vS+4*p+2}, v{vS+4*p+3}")
        e(f"v_add_f32 v{vL}, v{vL}, v4")
        e(f"v_add_f32 v{vL}, v{vL}, v5")

    stamp(7)
    vO = vR0
    for p, tile in enumerate(order):
        land(("V", tile, 0), ("V", tile, 1))
        ts_ = st["slot"][("V", tile)]
        for d in range(16):
            e(f"ds_read_b64_tr_b16 {vr(vST+2*d,2)}, v{vVA+(d&7)} offset:{ts_*8192 + (d>>3)*256}")
        if p < 8:
            pcalc(2 * p)
            pcalc(2 * p + 1)
        else:
            e("s_nop 0")
        for d in range(16):
            if d % 2 == 0:
                e(f"s_waitcnt lgkmcnt({14-d})")
            cc = "0" if p == 0 else vr(vO + 4 * d, 4)
            e(f"v_mfma_f32_16x16x16_bf16 {vr(vO+4*d,4)}, {vr(vST+2*d,2)}, {vr(vQ+2*p,2)}, {cc}")
        release("V", tile)
        if p == 8:
            e(f"v_and_b32 v5, 1, v{vN}")
            e("v_lshlrev_b32 v5, 6, v5")
            e(f"v_lshl_add_u32 v5, v{vGq}, 2, v5")
            e(f"s_lshl_b32 s66, {sWAVE}, 4")
            e(f"s_add_u32 s66, s66, {LX}")
            e("v_add_u32 v5, s66, v5")
            e(f"ds_write_b32 v5, v{vL}")
            e(f"v_lshlrev_b32 v8, 10, v{vN}")
            e(f"v_lshl_add_u32 v8, v{vGq}, 4, v8")
            e(f"s_lshl_b32 s66, {sWAVE}, 11")
            e(f"s_add_u32 s66, s66, {OPART}")
            e("v_add_u32 v8, s66, v8")
            e("v_lshrrev_b32 v9, 7, v0")
            e("v_and_b32 v10, 127, v0")
            e("v_lshlrev_b32 v11, 10, v9")
            e("v_lshl_add_u32 v11, v10, 3, v11")
            e(f"v_add_u32 v11, {OPART}, v11")
            e("v_lshlrev_b32 v28, 4, v9")
            e(f"v_add_u32 v28, {MX}, v28")
            e("v_lshlrev_b32 v29, 6, v9")
            e(f"v_add_u32 v29, {LX}, v29")
            e(f"s_lshl_b32 s68, {sG}, 1")
            e(f"s_add_u32 s68, s68, {sB}")
            e("s_lshl_b32 s68, s68, 3")
            e(f"s_add_u32 s68, s68, {sS}")
            e("s_lshl_b32 s68, s68, 12")
            e(f"s_add_u32 s69, s68, {WS_OA}")
            e(f"s_add_u32 s68, s68, {WS_OB}")
            e("v_lshlrev_b32 v7, 4, v0")
            e(f"v_cmp_gt_u32 s[62:63], 2, v{vN}")
            e(f"v_mov_b32 v6, {XM}")
            e("ds_read_b32 v6, v6")
            e("s_waitcnt lgkmcnt(0)")
            e(f"v_readfirstlane_b32 {sXM}, v6")
    stamp(8)
    e("s_mov_b64 s[66:67], exec")
    e("s_mov_b64 exec, s[62:63]")
    e("s_nop 5")
    for d in range(16):
        e(f"ds_write_b128 v8, {vr(vO+4*d,4)} offset:{d*64}")
    e("s_mov_b64 exec, s[66:67]")
    e("s_waitcnt lgkmcnt(0)")
    e("s_barrier")
    for w in range(4):
        e(f"ds_read_b64 {vr(vST+2*w,2)}, v11 offset:{w*2048}")
    e(f"ds_read_b128 {vr(vST+8,4)}, v28")
    for w in range(4):
        e(f"ds_read_b128 {vr(vST+12+4*w,4)}, v29 offset:{w*16}")
    e("v_mov_b32 v16, 0xfffffffe")
    e("s_waitcnt lgkmcnt(4)")
    m0 = vST + 8
    e(f"v_max3_f32 v14, v{m0}, v{m0+1}, v{m0+2}")
    e(f"v_max_f32 v14, v14, v{m0+3}")
    for w in range(4):
        e(f"v_sub_f32 v{m0+w}, v{m0+w}, v14")
    for w in range(4):
        e(f"v_exp_f32 v{m0+w}, v{m0+w}")
    e("s_waitcnt lgkmcnt(0)")
    e(f"v_mul_f32 v12, v{m0}, v{vST}")
    e(f"v_mul_f32 v13, v{m0}, v{vST+1}")
    for w in range(1, 4):
        e(f"v_fmac_f32 v12, v{m0+w}, v{vST+2*w}")
        e(f"v_fmac_f32 v13, v{m0+w}, v{vST+2*w+1}")
    for w in range(4):
        l0 = vST + 12 + 4 * w
        e(f"v_add_f32 v{l0}, v{l0}, v{l0+1}")
        e(f"v_add_f32 v{l0+2}, v{l0+2}, v{l0+3}")
        e(f"v_add_f32 v{l0}, v{l0}, v{l0+2}")
    e(f"v_mul_f32 v15, v{m0}, v{vST+12}")
    for w in range(1, 4):
        e(f"v_fmac_f32 v15, v{m0+w}, v{vST+12+4*w}")
    for r_ in (12, 13, 14, 15):
        e(f"v_min_u32 v{r_}, v{r_}, v16")
    e(f"buffer_store_dwordx4 v[12:15], v7, {SWS}, s69 offen")
    stamp(9)
    e("s_mov_b32 s61, s68")
    e("s_mov_b32 s60, 0")
    e(f"s_cmp_ge_u32 {sJ}, 14")
    e("s_cbranch_scc0 L_h1")
    e(f"buffer_store_dwordx4 v[12:15], v7, {SWS}, s68 offen sc1")
    e("s_branch L_final")
    e.label("L_h1")
    e("v_lshlrev_b32 v4, 15, v9")
    e("v_lshl_add_u32 v4, v10, 4, v4")
    e(f"s_lshl_b32 s66, {sHH}, 11")
    e(f"s_lshl_b32 s67, {sG}, 16")
    e("s_add_u32 s66, s66, s67")
    e(f"s_add_u32 s68, s66, {WS_OA}")
    e(f"s_add_u32 s69, s66, {WS_OB}")
    e(f"s_lshr_b32 s67, {sWAVE}, 1")
    e("s_lshl_b32 s67, s67, 3")
    e(f"s_lshr_b32 {sXM}, {sXM}, s67")
    if not apath or mapping != 0:
        e(f"s_mov_b32 {sXM}, 0")
    e(f"s_mov_b32 {sMISS}, 0xff")
    e(f"s_mov_b32 {sSPIN}, 0")
    e.label("L_h1poll")
    for s_ in range(8):
        e(f"s_bitcmp1_b32 {sMISS}, {s_}")
        e(f"s_cbranch_scc0 L_h1skip{s_}")
        e(f"s_bitcmp1_b32 {sXM}, {s_}")
        e(f"s_cselect_b32 s67, s68, s69")
        if s_:
            e(f"s_add_u32 s67, s67, {s_*4096}")
        e(f"buffer_load_dwordx4 {vr(vS+4*s_,4)}, v4, {SWS}, s67 offen sc1")
        e.label(f"L_h1skip{s_}")
    e("s_cmp_lg_u32 s60, 0")
    e("s_cbranch_scc1 L_h1w0")
    e("s_mov_b32 s60, 1")
    e(f"buffer_store_dwordx4 v[12:15], v7, {SWS}, s61 offen sc1")
    e("s_waitcnt vmcnt(1)")
    e("s_branch L_h1w1")
    e.label("L_h1w0")
    e("s_waitcnt vmcnt(0)")
    e.label("L_h1w1")
    for s_ in range(8):
        e(f"s_bitcmp1_b32 {sMISS}, {s_}")
        e(f"s_cbranch_scc0 L_h1chk{s_}")
        e(f"v_max3_u32 v7, v{vS+4*s_}, v{vS+4*s_+1}, v{vS+4*s_+2}")
        e(f"v_max_u32 v7, v7, v{vS+4*s_+3}")
        e("v_cmp_eq_u32 vcc, -1, v7")
        e(f"s_cmp_eq_u64 vcc, 0")
        e(f"s_cbranch_scc0 L_h1chk{s_}")
        e(f"s_bitset0_b32 {sMISS}, {s_}")
        e.label(f"L_h1chk{s_}")
    e(f"s_cmp_eq_u32 {sMISS}, 0")
    e("s_cbranch_scc1 L_h1done")
    e(f"s_add_u32 {sSPIN}, {sSPIN}, 1")
    e(f"s_cmp_lt_u32 {sSPIN}, 64")
    e(f"s_cselect_b32 {sXM}, {sXM}, 0")
    e(f"s_cmp_lt_u32 {sSPIN}, {SPIN_CAP}")
    e("s_cbranch_scc1 L_h1poll")
    e.label("L_h1done")
    stamp(10)
    e(f"v_max3_f32 v7, v{vS+2}, v{vS+6}, v{vS+10}")
    e(f"v_max3_f32 v7, v7, v{vS+14}, v{vS+18}")
    e(f"v_max3_f32 v7, v7, v{vS+22}, v{vS+26}")
    e(f"v_max_f32 v7, v7, v{vS+30}")
    for s_ in range(8):
        e(f"v_sub_f32 v{vS+4*s_+2}, v{vS+4*s_+2}, v7")
    for s_ in range(8):
        e(f"v_exp_f32 v{vS+4*s_+2}, v{vS+4*s_+2}")
    e("s_nop 0")
    e(f"v_mul_f32 v8, v{vS+2}, v{vS}")
    e(f"v_mul_f32 v11, v{vS+2}, v{vS+1}")
    e(f"v_mul_f32 v12, v{vS+2}, v{vS+3}")
    for s_ in range(1, 8):
        e(f"v_fmac_f32 v8, v{vS+4*s_+2}, v{vS+4*s_}")
        e(f"v_fmac_f32 v11, v{vS+4*s_+2}, v{vS+4*s_+1}")
        e(f"v_fmac_f32 v12, v{vS+4*s_+2}, v{vS+4*s_+3}")
    e("v_rcp_f32 v12, v12")
    e("v_lshlrev_b32 v13, 9, v9")
    e("v_lshl_add_u32 v13, v10, 2, v13")
    e("v_mul_f32 v8, v8, v12")
    e("v_mul_f32 v11, v11, v12")
    e(f"v_add_u32 v13, {OSB}, v13")
    e("v_cvt_pk_bf16_f32 v8, v8, v11")
    e("ds_write_b32 v13, v8")
    e(f"v_and_b32 v4, 1, v{vN}")
    e("v_lshlrev_b32 v4, 9, v4")
    e(f"v_lshl_add_u32 v4, v{vGq}, 4, v4")
    e(f"v_add_u32 v4, {OSB}, v4")
    e(f"v_lshlrev_b32 v5, 8, v{vN}")
    e(f"v_lshl_add_u32 v5, v{vGq}, 4, v5")
    e(f"s_lshl_b32 s66, {sG}, 1")
    e(f"s_add_u32 s66, s66, {sHH}")
    e("s_lshl_b32 s66, s66, 9")
    e(f"s_lshl_b32 s67, {sC7}, 14")
    e("s_add_u32 s66, s66, s67")
    e(f"s_lshl_b32 s67, {sWAVE}, 6")
    e("s_add_u32 s66, s66, s67")
    e(f"s_add_u32 s66, s66, {WS_YS}")
    e("s_waitcnt lgkmcnt(0)")
    e("s_barrier")
    for t in range(8):
        e(f"ds_read_b128 {vr(vST+4*t,4)}, v4 offset:{t*64}")
    for t in range(8):
        e(f"s_waitcnt lgkmcnt({7-t})")
        cc = "0" if t == 0 else vr(vS, 4)
        e(f"v_mfma_f32_16x16x32_bf16 {vr(vS,4)}, {vr(vWO+4*t,4)}, {vr(vST+4*t,4)}, {cc}")
    e("s_mov_b64 exec, s[62:63]")
    e("s_nop 7")
    for r_ in range(4):
        e(f"v_min_u32 v{vS+r_}, v{vS+r_}, v16")
    e(f"buffer_store_dwordx4 {vr(vS,4)}, v5, {SWS}, s66 offen sc1")
    stamp(11)
    if ts:
        e("s_mov_b64 exec, -1")
        e("s_branch L_ts")
    e("s_endpgm")

    e.label("L_final")
    e(f"s_lshl_b32 s66, {sG}, 1")
    e(f"s_add_u32 s66, s66, {sJ}")
    e("s_sub_u32 s66, s66, 14")
    e("s_cmp_ge_u32 s66, 14")
    e("s_cbranch_scc1 L_fin_exit")
    e("s_lshr_b32 s74, s66, 1")
    e("s_and_b32 s73, s66, 1")
    e("s_mul_i32 s66, s73, 896")
    e("s_add_u32 s52, s24, s66")
    e("s_addc_u32 s53, s25, 0")
    e("s_movk_i32 s54, 896")
    e("s_mov_b32 s55, 0x00020000")
    e("s_mov_b32 s60, s16")
    e("s_mov_b32 s61, s17")
    e("s_movk_i32 s62, 896")
    e("s_mov_b32 s63, 0x00020000")
    e("s_mov_b32 s56, s18")
    e("s_mov_b32 s57, s19")
    e("s_movk_i32 s58, 1792")
    e("s_mov_b32 s59, 0x00020000")
    e(f"v_lshlrev_b32 v4, 4, v{vLANE}")
    e(f"buffer_load_dwordx4 {vr(vST,4)}, v4, {SGW}, 0 offen")
    e(f"buffer_load_dwordx4 {vr(vST+4,4)}, v4, {SX}, 0 offen")
    e(f"v_mov_b32 v6, {XM}")
    e("ds_read2_b32 v[14:15], v6 offset0:1 offset1:2")
    e(f"v_lshlrev_b32 v5, 5, v{vLANE}")
    e("s_waitcnt vmcnt(0) lgkmcnt(0)")
    e("v_mov_b32 v7, 0")
    for k in range(4):
        e(f"v_lshlrev_b32 v8, 16, v{vST+k}")
        e(f"v_lshlrev_b32 v9, 16, v{vST+4+k}")
        e(f"v_and_b32 v10, 0xffff0000, v{vST+k}")
        e(f"v_and_b32 v11, 0xffff0000, v{vST+4+k}")
        e("v_mul_f32 v8, v8, v9")
        e("v_mul_f32 v10, v10, v11")
        e("v_cvt_pk_bf16_f32 v8, v8, v10")
        e("v_lshlrev_b32 v9, 16, v8")
        e("v_and_b32 v8, 0xffff0000, v8")
        e("v_add_f32 v7, v7, v9")
        e("v_add_f32 v7, v7, v8")
    e(f"v_lshlrev_b32 v8, 2, v{vLANE}")
    for m_ in (1, 2, 4, 8, 16, 32):
        e(f"v_xor_b32 v9, {m_*4}, v8")
        e("ds_bpermute_b32 v10, v9, v7")
        e("s_waitcnt lgkmcnt(0)")
        e("v_add_f32 v7, v7, v10")
    e("v_cvt_pk_bf16_f32 v7, v7, v7")
    e("v_lshlrev_b32 v7, 16, v7")
    e(f"v_mul_f32 v8, {f2u(-1.4426950408889634)}, v7")
    e("v_exp_f32 v8, v8")
    e("s_nop 0")
    e("v_add_f32 v8, 1.0, v8")
    e("v_rcp_f32 v8, v8")
    e("s_nop 0")
    e("v_cvt_pk_bf16_f32 v8, v8, v8")
    e("v_lshlrev_b32 v30, 16, v8")
    e("v_sub_f32 v9, 1.0, v30")
    e("v_cvt_pk_bf16_f32 v9, v9, v9")
    e("v_lshlrev_b32 v31, 16, v9")
    e(f"s_mov_b32 {sSPIN}, 0")
    e.label("L_fflag")
    e(f"buffer_load_dwordx4 {vr(vST,4)}, v5, {SWS}, 0 offen offset:{WS_XT} sc1" if WS_XT < 4096 else f"s_movk_i32 s66, {WS_XT}")
    e(f"buffer_load_dwordx4 {vr(vST,4)}, v5, {SWS}, s66 offen sc1")
    e(f"buffer_load_dwordx4 {vr(vST+4,4)}, v5, {SWS}, s66 offen offset:16 sc1")
    e("s_waitcnt vmcnt(0)")
    e(f"v_xor_b32 v6, v{vST+1}, v14")
    e(f"v_xor_b32 v7, v{vST+3}, v14")
    e(f"v_xor_b32 v8, v{vST+5}, v14")
    e(f"v_xor_b32 v9, v{vST+7}, v14")
    e("v_or_b32 v6, v6, v7")
    e("v_or3_b32 v6, v6, v8, v9")
    e("v_cmp_ne_u32 vcc, 0, v6")
    e("s_cmp_eq_u64 vcc, 0")
    e("s_cbranch_scc1 L_fflag_ok")
    e(f"s_add_u32 {sSPIN}, {sSPIN}, 1")
    e(f"s_cmp_lt_u32 {sSPIN}, {SPIN_CAP}")
    e("s_cbranch_scc1 L_fflag")
    e.label("L_fflag_ok")
    e(f"v_lshlrev_b32 v4, 9, v{vGq}")
    e(f"v_lshl_add_u32 v4, v{vN}, 2, v4")
    e("s_lshl_b32 s66, s74, 14")
    e("s_lshl_b32 s67, s73, 8")
    e("s_add_u32 s66, s66, s67")
    e(f"s_lshl_b32 s67, {sWAVE}, 6")
    e("s_add_u32 s66, s66, s67")
    e(f"s_add_u32 s66, s66, {WS_YS}")
    e("s_mul_i32 s68, s73, 896")
    e("s_lshl_b32 s67, s74, 7")
    e("s_add_u32 s68, s68, s67")
    e(f"s_lshl_b32 s67, {sWAVE}, 5")
    e("s_add_u32 s68, s68, s67")
    e(f"v_lshlrev_b32 v5, 1, v{vN}")
    e(f"v_lshlrev_b32 v9, 2, v{vLANE}")
    e("v_xor_b32 v10, 64, v9")
    e("v_xor_b32 v12, 128, v9")
    e(f"v_cmp_gt_u32 s[62:63], 16, v{vLANE}")
    e(f"s_mov_b32 {sMISS}, 0xff")
    e(f"s_mov_b32 {sSPIN}, 0")
    e.label("L_h2poll")
    for i in range(8):
        e(f"s_bitcmp1_b32 {sMISS}, {i}")
        e(f"s_cbranch_scc0 L_h2skip{i}")
        e(f"s_add_u32 s67, s66, {i*2048}")
        e(f"buffer_load_dword v{vS+i}, v4, {SWS}, s67 offen sc1")
        e.label(f"L_h2skip{i}")
    e("s_waitcnt vmcnt(0)")
    for i in range(8):
        e(f"s_bitcmp1_b32 {sMISS}, {i}")
        e(f"s_cbranch_scc0 L_h2chk{i}")
        e(f"v_cmp_eq_u32 vcc, -1, v{vS+i}")
        e(f"s_cmp_eq_u64 vcc, 0")
        e(f"s_cbranch_scc0 L_h2chk{i}")
        e(f"s_bitset0_b32 {sMISS}, {i}")
        e.label(f"L_h2chk{i}")
    e(f"s_cmp_eq_u32 {sMISS}, 0")
    e("s_cbranch_scc1 L_h2done")
    e(f"s_add_u32 {sSPIN}, {sSPIN}, 1")
    e(f"s_cmp_lt_u32 {sSPIN}, {SPIN_CAP}")
    e("s_cbranch_scc1 L_h2poll")
    e.label("L_h2done")
    stamp(10)
    e(f"v_add_f32 v8, v{vS}, v{vS+1}")
    e(f"v_add_f32 v7, v{vS+2}, v{vS+3}")
    e(f"v_add_f32 v13, v{vS+4}, v{vS+5}")
    e(f"v_add_f32 v11, v{vS+6}, v{vS+7}")
    e("v_add_f32 v8, v8, v7")
    e("v_add_f32 v13, v13, v11")
    e("v_mul_f32 v8, v8, v30")
    e("v_fmac_f32 v8, v13, v31")
    e("ds_bpermute_b32 v11, v10, v8")
    e("s_waitcnt lgkmcnt(0)")
    e("v_add_f32 v8, v8, v11")
    e("ds_bpermute_b32 v11, v12, v8")
    e("s_waitcnt lgkmcnt(0)")
    e("v_add_f32 v8, v8, v11")
    e("v_cvt_pk_bf16_f32 v8, v8, v8")
    e("s_mov_b64 exec, s[62:63]")
    e(f"buffer_store_short v8, v5, {SOUT}, s68 offen")
    e("s_or_b32 s66, s73, s74")
    e(f"s_or_b32 s66, s66, {sWAVE}")
    e("s_cmp_lg_u32 s66, 0")
    e("s_cbranch_scc1 L_nobump")
    e("v_add_u32 v15, 1, v15")
    e("v_mov_b32 v5, 0")
    e(f"buffer_store_dword v15, v5, {SWS}, 0 offen")
    e.label("L_nobump")
    stamp(11)
    if ts:
        e("s_mov_b64 exec, -1")
        e("s_branch L_ts")
    e.label("L_fin_exit")
    if ts:
        e("s_branch L_ts")
    e("s_endpgm")

    e.label("L_helper")
    e.q = []
    e("s_setprio 3")
    e(f"v_lshrrev_b32 v4, 2, v{vLANE}")
    e(f"v_and_b32 v5, 3, v{vLANE}")
    e(f"v_lshrrev_b32 v6, 5, v{vLANE}")
    e("v_lshlrev_b32 v6, 1, v6")
    e("v_xor_b32 v5, v5, v6")
    e("v_lshlrev_b32 v5, 4, v5")
    e(f"v_lshl_add_u32 v{vW}, v4, 13, v5")
    e(f"s_lshl_b32 s67, {sH}, 10")
    e(f"s_lshl_b32 s68, {sJ}, 6")
    e("s_add_u32 s67, s67, s68")
    e(f"v_and_b32 v4, 1, v{vN}")
    e("s_movk_i32 s66, 896")
    e("v_mul_lo_u32 v4, v4, s66")
    e(f"v_lshl_add_u32 v4, v{vGq}, 4, v4")
    e("v_mov_b32 v7, 0")
    e(f"v_mov_b32 v8, {XM}")
    e("v_mov_b32 v9, 0")
    e("ds_write_b32 v8, v9 offset:12")
    e(f"v_lshlrev_b32 v5, 4, v{vLANE}")
    e(f"s_lshl_b32 s68, {sG}, 1")
    e(f"s_add_u32 s68, s68, {sB}")
    e("s_lshl_b32 s68, s68, 3")
    e(f"s_add_u32 s68, s68, {sS}")
    e("s_lshl_b32 s68, s68, 12")
    e(f"s_add_u32 s70, s68, {WS_OA}")
    e(f"s_add_u32 s68, s68, {WS_OB}")
    e(f"s_lshl_b32 s69, {sG}, 1")
    e(f"s_add_u32 s69, s69, {sHH}")
    e("s_lshl_b32 s69, s69, 9")
    e(f"s_lshl_b32 s71, {sC7}, 14")
    e("s_add_u32 s69, s69, s71")
    e(f"s_add_u32 s69, s69, {WS_YS}")
    e(f"s_cmp_lt_u32 {sJ}, 14")
    e("s_cselect_b32 s69, s69, 0x40000000")
    e("v_mov_b32 v8, -1")
    e("v_mov_b32 v9, -1")
    e("v_mov_b32 v10, -1")
    e("v_mov_b32 v11, -1")
    e(f"v_cmp_gt_u32 s[62:63], 32, v{vLANE}")
    e("s_waitcnt lgkmcnt(0)")
    stamp(1)
    e("s_mov_b32 s36, s12")
    e("s_mov_b32 s37, s13")
    e("s_mov_b32 s38, 3670016")
    e("s_mov_b32 s39, 0x00020000")
    e(f"s_mov_b32 m0, {AUX}")
    e("s_mov_b32 s44, s22")
    e("s_mov_b32 s45, s23")
    e(f"s_mov_b32 s46, {WS_SIZE}")
    e("s_mov_b32 s47, 0x00020000")
    for i in range(28 if b0 != 2 else 0):
        e.vm(f"buffer_load_dwordx4 v{vW}, {SWQ}, s67 offen{NT} lds", "WQ")
        if i < 27:
            e("s_add_u32 m0, m0, 1024")
            e(f"s_add_u32 s67, s67, {16*8192}")
    if b0 == 1:
        e("s_barrier")
    e.vm(f"buffer_load_dword v26, v7, {SWS}, 0 offen", "EP")
    e("s_mov_b32 s52, s24")
    e("s_mov_b32 s53, s25")
    e("s_movk_i32 s54, 1792")
    e("s_mov_b32 s55, 0x00020000")
    XF = 128
    for t in range(14):
        e.vm(f"buffer_load_dwordx4 {vr(XF+4*t,4)}, v4, {SX}, 0 offen offset:{t*64}", "X")
    for q in range(4):
        e.vm(f"buffer_store_dwordx4 v[8:11], v5, {SWS}, s68 offen offset:{q*1024} sc1", "CL")
    for q in range(4):
        e.vm(f"buffer_store_dwordx4 v[8:11], v5, {SWS}, s70 offen offset:{q*1024} sc1", "CL")
    e("s_mov_b64 exec, s[62:63]")
    e.vm(f"buffer_store_dwordx4 v[8:11], v5, {SWS}, s69 offen sc1", "CL")
    e("s_mov_b64 exec, -1")
    stamp(2)
    e(f"v_bfe_u32 v12, v{vLANE}, 2, 2")
    e(f"v_lshl_add_u32 v12, v{vGq}, 3, v12")
    e(f"v_and_b32 v13, 3, v{vLANE}")
    e("v_lshlrev_b32 v13, 3, v13")
    e("v_lshl_add_u32 v13, v12, 6, v13")
    e(f"v_add_u32 v13, {AUX}, v13")
    e(f"v_and_b32 v14, 1, v{vGq}")
    for ct in range(2):
        e(f"v_xor_b32 v6, {ct}, v14")
        e(f"v_lshl_add_u32 v{16+ct}, v6, 5, v13")
    e(f"v_and_b32 v6, 1, v{vN}")
    e("v_lshlrev_b32 v6, 11, v6")
    e(f"v_lshrrev_b32 v7, 1, v{vN}")
    e("v_lshl_add_u32 v6, v7, 6, v6")
    e(f"v_lshl_add_u32 v6, v{vGq}, 4, v6")
    e("v_cmp_eq_u32 s[56:57], 1, v7")
    e(f"v_cmp_gt_u32 s[58:59], 4, v{vN}")
    e(f"s_lshl_b32 s66, {sG}, 12")
    e(f"s_lshl_b32 s67, {sJ}, 7")
    e("s_add_u32 s66, s66, s67")
    e(f"s_add_u32 s66, s66, {WS_QP}")
    e("s_getreg_b32 s72, hwreg(HW_REG_XCC_ID)")
    e("s_and_b32 s72, s72, 15")
    e(f"v_lshlrev_b32 v24, 4, v{vLANE}")
    e(f"s_lshl_b32 s68, {sG}, 12")
    e(f"s_lshl_b32 s67, {sB}, 11")
    e("s_add_u32 s68, s68, s67")
    e(f"s_add_u32 s68, s68, {WS_QP}")
    e(f"s_lshl_b32 s67, {sG}, 4")
    e(f"s_add_u32 s67, s67, {sJ}")
    e("s_lshl_b32 s67, s67, 3")
    e(f"s_add_u32 s67, s67, {WS_XT}")
    e("v_mov_b32 v28, s72")
    e("v_mov_b32 v7, 0")
    e(f"v_cmp_eq_u32 s[62:63], 0, v{vLANE}")
    e(f"v_lshlrev_b32 v25, 3, v{vLANE}")
    e(f"v_add_u32 v25, 0, v25")
    e.wait_tag("WQ", "X", "EP")
    if b0 == 2:
        e("s_barrier")
    stamp(3)
    e("s_mov_b32 s69, 0x9E3779B1")
    e("v_mul_lo_u32 v27, v26, s69")
    e("v_add_u32 v27, 0x7F4A7C15, v27")
    e("v_mov_b32 v29, v27")
    WF = 32

    def qreads(t):
        for ct in range(2):
            d = WF + (t & 3) * 8 + ct * 4
            e(f"ds_read_b64_tr_b16 {vr(d,2)}, v{16+ct} offset:{t*2048}")
            e(f"ds_read_b64_tr_b16 {vr(d+2,2)}, v{16+ct} offset:{t*2048+256}")
    for t in range(3):
        qreads(t)
    for t in range(14):
        ahead = min(13, t + 2) - t
        e(f"s_waitcnt lgkmcnt({4*ahead})")
        for ct in range(2):
            d = WF + (t & 3) * 8 + ct * 4
            cc = "0" if t == 0 else vr(184 + 4 * ct, 4)
            e(f"v_mfma_f32_16x16x32_bf16 {vr(184+4*ct,4)}, {vr(d,4)}, {vr(XF+4*t,4)}, {cc}")
        if t + 3 < 14:
            qreads(t + 3)
    e("s_waitcnt vmcnt(0)")
    e.q = []
    e("s_nop 7")
    e("v_cvt_pk_bf16_f32 v32, v184, v185")
    e("v_cvt_pk_bf16_f32 v33, v186, v187")
    e("v_cvt_pk_bf16_f32 v34, v188, v189")
    e("v_cvt_pk_bf16_f32 v35, v190, v191")
    e("v_mov_b32 v45, v27")
    e("v_mov_b32 v47, v27")
    e("v_cndmask_b32 v44, v32, v34, s[56:57]")
    e("v_cndmask_b32 v46, v33, v35, s[56:57]")
    e(f"s_add_u32 s69, s66, {WS_QA - WS_QP}")
    e(f"s_add_u32 s70, s67, {WS_XA - WS_XT}")
    e("s_mov_b64 exec, s[58:59]")
    e(f"buffer_store_dwordx4 v[44:47], v6, {SWS}, s69 offen")
    e("s_mov_b64 exec, s[62:63]")
    e(f"buffer_store_dwordx2 v[28:29], v7, {SWS}, s70 offen")
    e("s_mov_b64 exec, -1")
    stamp(6)
    e(f"s_lshl_b32 s74, {sG}, 7")
    e(f"s_add_u32 s74, s74, {WS_XT}")
    e(f"v_cmp_gt_u32 s[60:61], 16, v{vLANE}")
    e(f"s_mov_b32 {sSPIN}, 0")
    e("s_mov_b32 s73, 0")
    e.label("L_qpoll")
    e(f"s_cmp_lt_u32 {sSPIN}, {qa_rounds}")
    e(f"s_cselect_b32 s69, {WS_QA - WS_QP}, 0")
    e(f"s_cselect_b32 s70, {WS_XA - WS_XT}, 0")
    e("s_add_u32 s69, s69, s68")
    e("s_add_u32 s70, s70, s74")
    e(f"buffer_load_dwordx4 v[64:67], v24, {SWS}, s69 offen sc1")
    e(f"buffer_load_dwordx4 v[68:71], v24, {SWS}, s69 offen offset:1024 sc1")
    e("s_mov_b64 exec, s[60:61]")
    e(f"buffer_load_dwordx2 v[30:31], v25, {SWS}, s70 offen sc1")
    e("s_mov_b64 exec, -1")
    e("v_mov_b32 v73, 0")
    e("s_cmp_lg_u32 s73, 0")
    e("s_cbranch_scc1 L_qw0")
    e("s_mov_b32 s73, 1")
    e("s_mov_b64 exec, s[58:59]")
    e(f"buffer_store_dwordx4 v[44:47], v6, {SWS}, s66 offen sc1")
    e("s_mov_b64 exec, s[62:63]")
    e(f"buffer_store_dwordx2 v[28:29], v7, {SWS}, s67 offen sc1")
    e("s_mov_b64 exec, -1")
    e("s_waitcnt vmcnt(2)")
    e("s_branch L_qw1")
    e.label("L_qw0")
    e("s_waitcnt vmcnt(0)")
    e.label("L_qw1")
    e("v_xor_b32 v72, v65, v27")
    e("s_mov_b64 exec, s[60:61]")
    e("v_xor_b32 v73, v31, v27")
    e("s_mov_b64 exec, -1")
    e("v_xor_b32 v74, v67, v27")
    e("v_or3_b32 v72, v72, v73, v74")
    e("v_xor_b32 v74, v69, v27")
    e("v_xor_b32 v75, v71, v27")
    e("v_or3_b32 v72, v72, v74, v75")
    if ts:
        for rr in range(3):
            e(f"s_cmp_eq_u32 {sSPIN}, {rr}")
            e(f"s_cbranch_scc0 L_rs{rr}")
            stamp(9 + rr)
            e.label(f"L_rs{rr}")
    e("v_cmp_ne_u32 vcc, 0, v72")
    e("s_cmp_eq_u64 vcc, 0")
    e("s_cbranch_scc1 L_qready")
    e(f"s_add_u32 {sSPIN}, {sSPIN}, 1")
    e(f"s_cmp_lt_u32 {sSPIN}, {SPIN_CAP}")
    e("s_cbranch_scc1 L_qpoll")
    e.label("L_qready")
    stamp(7)
    if ts:
        e(f"s_mov_b32 s84, {sSPIN}")
    e("v_mov_b32 v65, v66")
    e("v_mov_b32 v69, v70")
    e(f"v_lshlrev_b32 v9, 3, v{vLANE}")
    e(f"v_add_u32 v9, {QS}, v9")
    e("ds_write_b64 v9, v[64:65]")
    e("ds_write_b64 v9, v[68:69] offset:512")
    e("s_mov_b64 exec, s[60:61]")
    e("v_cmp_eq_u32 vcc, s72, v30")
    e("s_mov_b64 exec, -1")
    e("s_nop 1")
    e("v_mov_b32 v8, vcc_lo")
    e("v_mov_b32 v9, v27")
    e("v_mov_b32 v10, v26")
    e("v_mov_b32 v11, 1")
    e(f"v_mov_b32 v12, {XM}")
    e("s_waitcnt lgkmcnt(0)")
    e("ds_write_b128 v12, v[8:11]")
    e("s_waitcnt lgkmcnt(0)")
    stamp(8)
    e("s_cmp_lg_u32 s73, 0")
    e("s_cbranch_scc1 L_qBd")
    e("s_mov_b64 exec, s[58:59]")
    e(f"buffer_store_dwordx4 v[44:47], v6, {SWS}, s66 offen sc1")
    e("s_mov_b64 exec, s[62:63]")
    e(f"buffer_store_dwordx2 v[28:29], v7, {SWS}, s67 offen sc1")
    e("s_mov_b64 exec, -1")
    e.label("L_qBd")
    e("s_barrier")
    e("s_barrier")
    if ts:
        e("s_branch L_ts")
    e("s_endpgm")

    if ts:
        e.label("L_ts")
        e("s_waitcnt lgkmcnt(0)")
        e("s_mov_b32 s44, s22")
        e("s_mov_b32 s45, s23")
        e(f"s_mov_b32 s46, {WS_SIZE}")
        e("s_mov_b32 s47, 0x00020000")
        if dbgts:
            e("s_mov_b32 s48, s20")
            e("s_mov_b32 s49, s21")
            e("s_movk_i32 s50, 256")
            e("s_mov_b32 s51, 0x00020000")
            e(f"v_cmp_eq_u32 vcc, 0, v{vLANE}")
            e("s_and_saveexec_b64 s[68:69], vcc")
            e("v_mov_b32 v4, 0")
            e("s_cmp_eq_u32 s3, 4")
            e("s_cselect_b32 s66, 64, 0")
            e("s_not_b32 s67, s76")
            e("v_mov_b32 v5, s67")
            e(f"buffer_atomic_umax v5, v4, {SDBG}, s66 offen sc1")
            for i in range(1, 12):
                e(f"v_mov_b32 v5, s{76+2*i}")
                e(f"buffer_atomic_umax v5, v4, {SDBG}, s66 offen offset:{4*i} sc1")
            e("s_endpgm")
        e("s_mul_i32 s66, s2, 5")
        e("s_add_u32 s66, s66, s3")
        e("s_lshl_b32 s66, s66, 6")
        e(f"s_add_u32 s66, s66, {WS_TS}")
        e("v_mov_b32 v4, s66")
        e(f"v_cmp_eq_u32 vcc, 0, v{vLANE}")
        e("s_and_saveexec_b64 s[68:69], vcc")
        for i in range(12):
            e(f"v_mov_b32 v5, s{76+2*i}")
            e(f"buffer_store_dword v5, v4, {SWS}, 0 offen offset:{4*i}")
        e("s_endpgm")
    e.label("L_end")
    e("s_endpgm")
    A('.section .rodata,"a"')
    A(".p2align 6")
    A(f".amdhsa_kernel {NAME}_kernel")
    A(f"  .amdhsa_next_free_vgpr {NVGPR}")
    A("  .amdhsa_next_free_sgpr 102")
    A(f"  .amdhsa_accum_offset {NVGPR}")
    A("  .amdhsa_group_segment_fixed_size 0")
    A("  .amdhsa_kernarg_size 112")
    A("  .amdhsa_user_sgpr_count 2")
    A("  .amdhsa_user_sgpr_kernarg_segment_ptr 1")
    A("  .amdhsa_system_sgpr_workgroup_id_x 1")
    A(".end_amdhsa_kernel")
    return "\n".join(e.o) + "\n"


if __name__ == "__main__":
    out = sys.argv[1] if len(sys.argv) > 1 else "k2.s"
    kw = {}
    for a in sys.argv[2:]:
        if a == "ts":
            kw["ts"] = True
        elif "=" in a:
            k, v = a.split("=")
            kw[k] = int(v)
    open(out, "w").write(gen(**kw))
```
